```python
import torch

def _softmax(x, axis=-1):
    return torch.softmax(x, dim=axis)
def _gelu(x):
    return torch.nn.functional.gelu(x, approximate="tanh")
def _silu(x):
    return torch.nn.functional.silu(x)
def _sigmoid(x):
    return torch.sigmoid(x)
def _layernorm(x, axis=-1, eps=1e-5):
    m = x.mean(dim=axis, keepdim=True)
    v = x.var(dim=axis, keepdim=True, unbiased=False)
    return (x - m) / torch.sqrt(v + eps)
def _scatter_add(tgt, idx, src, axis=0):
    return tgt.clone().index_add_(axis, idx, src)
def _segment_sum(src, seg, n):
    out = torch.zeros((n,) + src.shape[1:], dtype=src.dtype)
    return out.index_add_(0, seg, src)
def _pad(x, pw):
    flat = tuple(v for pair in reversed(pw) for v in pair)
    return torch.nn.functional.pad(x, flat)

kernel_name = 'standalone__gqa_softmax__near_ridge'

def setup_inputs():

    _w = (lambda a: (lambda t: t.to(torch.bfloat16) if t.is_floating_point() else t)(torch.as_tensor(a)))
    B, Hq, Hkv, Sq, Sk, D = 16, 32, 32, 512, 512, 128
    return {
        "q": _w((lambda *s: torch.randn(*s, dtype=torch.bfloat16) * 0.8)(B, Hq, Sq, D)),
        "k": _w((lambda *s: torch.randn(*s, dtype=torch.bfloat16) * 0.8)(B, Hkv, Sk, D)),
        "v": _w((lambda *s: torch.randn(*s, dtype=torch.bfloat16) * 0.05)(B, Hkv, Sk, D)),
    }

def reference(q, k, v):
    B, Hq, Sq, D = q.shape
    Hkv = k.shape[1]
    rep = Hq // Hkv
    k = (lambda x, n, axis: torch.repeat_interleave(x, n, dim=axis))(k, rep, axis=1)
    v = (lambda x, n, axis: torch.repeat_interleave(x, n, dim=axis))(v, rep, axis=1)
    scale = D ** -0.5
    scores = torch.einsum("bhqd,bhkd->bhqk", q, k) * scale
    p = _softmax(scores, axis=-1)
    return torch.einsum("bhqk,bhkd->bhqd", p, v)
```

```python
import sys, struct, math
CFG = dict(force_slow=0, thr_log2=30, lgk_window=18, pairmode=1)
for a in sys.argv[2:]:
    k, v = a.split('='); CFG[k] = int(v)

class I:
    __slots__ = ('t', 'k', 'd', 'u', 'tag', 'prev', 'c')
    def __init__(s, t, k, d=(), u=(), tag=None, prev=False, c=()):
        s.t = t; s.k = k; s.d = set(d); s.u = set(u); s.tag = tag; s.prev = prev; s.c = set(c)
def R(p, a, n=1): return [f'{p}{a+i}' for i in range(n)]
def rr(p, a, n): return f'{p}[{a}:{a+n-1}]' if n > 1 else f'{p}{a}'

O = [0, 64]; S = [128, 144]; P = [160, 168]
KA = 176; KB = 184; VB = 192; VC = 196
DK0 = 200; DK1 = 201; DV = 202; VST = 203
L = [204, 205]; INV = [206, 207]; NMC = [208, 209]; MT = [210, 211]
T = 212
AQ = [0, 32]; AK = 64; AV = 96
sQ, sK, sV, sO = 8, 12, 16, 20
sW2048 = 24; sW8192 = 25; sHead = 26; sHeadN = 27; sQN = 28; sOprev = 29; sT = 30; sB = 31
sC = 32; sNegC = 33; sBad = 34; sBit0 = 35; sBit1 = 36; sT2 = 37; sHalf = 38; sOprev1 = 39; sThr = 40
sHead0 = 41; sIdx = 42; sTile = 43; sT3 = 44; sOcur = 45; sWv = 46
OOB = 0x40000000
cval = math.log2(math.e) / math.sqrt(128.0)
def fbits(x): return struct.unpack('<I', struct.pack('<f', x))[0]

def mfma(dst, a, b, c0=False, prev=False):
    ctext = '0' if c0 else rr('v', dst, 16)
    return I(f'v_mfma_f32_32x32x16_bf16 {rr("v",dst,16)}, {rr(a[0],a[1],4)}, {rr(b[0],b[1],4)}, {ctext}', 'mfma',
             R('v', dst, 16), R(a[0], a[1], 4) + R(b[0], b[1], 4), prev=prev, c=([] if c0 else R('v', dst, 16)))
def valu(t, d, u, prev=False, k='valu'): return I(t, k, d, u, prev=prev)
def salu(t, prev=False): return I(t, 'salu', prev=prev)

def kaddr(pos):
    return (KA, pos * 8192) if pos < 8 else (KB, (pos - 8) * 8192)
def vaddr(pos):
    return (VB, 16384 + pos * 8192) if pos < 6 else (VC, (pos - 6) * 8192)
def kread(t, pos):
    b, o = kaddr(pos)
    return I(f'ds_read_b128 {rr("a",AK+4*t,4)}, v{b+t} offset:{o}', 'ds', R('a', AK + 4 * t, 4), [f'v{b+t}'])
def vread(f, sec, pos):
    u, db = f >> 2, f & 3
    b, o = vaddr(pos)
    return I(f'ds_read_b64_tr_b16 {rr("a",AV+4*f+2*sec,2)}, v{b+db} offset:{o+u*4096+sec*2048}', 'ds',
             R('a', AV + 4 * f + 2 * sec, 2), [f'v{b+db}'])
def dma_slot(s):
    pos = s % 10; nb = s >= 20; ss = s % 20
    kb = pos * 8192; vb = 81920 + pos * 8192
    def ld(v, srd, off, tag): return I(f'buffer_load_dwordx4 v{v}, s[{srd}:{srd+3}], s{sT} offen offset:{off} lds', 'vm', [], [f'v{v}'], tag=tag)
    tag = ('slot', s)
    if ss < 4:
        base = sQN if nb else None
        assert nb or s < 4
        src = sQN
        g = [[salu(f's_add_u32 s{sT}, s{src}, {ss*16384}'), salu(f's_add_u32 m0, s{sW2048}, {kb}'), I('s_nop 0', 'nop'), ld(DK0, sQ, 0, tag)],
             [ld(DK1, sQ, 1024, tag)],
             [salu(f's_add_u32 s{sT}, s{src}, {ss*16384+8192}'), salu(f's_add_u32 m0, s{sW2048}, {vb}'), I('s_nop 0', 'nop'), ld(DK0, sQ, 0, tag)],
             [ld(DK1, sQ, 1024, tag)]]
    else:
        src = sHeadN if nb else sHead
        tile = ss - 4
        g = [[salu(f's_add_u32 m0, s{sW2048}, {kb}'), salu(f's_add_u32 s{sT}, s{src}, {tile*8192}'), ld(DK0, sK, 0, tag)],
             [ld(DK1, sK, 1024, tag)],
             [salu(f's_add_u32 m0, s{sW2048}, {vb}'), I('s_nop 0', 'nop'), ld(DV, sV, 0, tag)],
             [ld(DV, sV, 1024, tag)]]
    return g
SCHED = {0: [9], 1: [10, 11], 2: [12, 13], 3: [14, 15], 4: [16, 17], 5: [18], 6: [19]}
for j in range(7, 16): SCHED[j] = [13 + j]

def lfin(q, bit, prev):
    l, inv, t = L[q], INV[q], MT[q]
    return [valu(f'v_mov_b32 v{t}, v{l}', [f'v{t}'], [f'v{l}'], prev), I('s_nop 1', 'nop', prev=prev),
            valu(f'v_permlane32_swap_b32 v{l}, v{t}', [f'v{l}', f'v{t}'], [f'v{l}', f'v{t}'], prev, 'perm'),
            I('s_nop 1', 'nop', prev=prev),
            valu(f'v_add_f32 v{l}, v{l}, v{t}', [f'v{l}'], [f'v{l}', f'v{t}'], prev),
            valu(f'v_rcp_f32 v{inv}, v{l}', [f'v{inv}'], [f'v{l}'], prev, 'trans'),
            valu(f'v_cmp_nle_f32 vcc, v{l}, v{NMC[q]+0}' if False else f'v_cmp_nge_f32 vcc, s{sThr}, v{l}', [], [f'v{l}'], prev),
            I('s_nop 3', 'nop', prev=prev),
            salu(f's_cmp_lg_u64 vcc, 0', prev), salu(f's_cselect_b32 s{sT2}, s{bit}, 0', prev),
            salu(f's_or_b32 s{sBad}, s{sBad}, s{sT2}', prev)]
def oepi(q, db, soff, prev):
    o = O[q] + 16 * db; inv = INV[q]; r = []
    for hf in range(2):
        tb = T + 8 * hf
        for i in range(8):
            r.append(valu(f'v_mul_f32 v{tb+i}, v{o+8*hf+i}, v{inv}', [f'v{tb+i}'], [f'v{o+8*hf+i}', f'v{inv}'], prev))
        for i in range(4):
            r.append(valu(f'v_cvt_pk_bf16_f32 v{tb+i}, v{tb+2*i}, v{tb+2*i+1}', [f'v{tb+i}'], [f'v{tb+2*i}', f'v{tb+2*i+1}'], prev))
        r.append(I('s_nop 0', 'nop', prev=prev))
        r.append(valu(f'v_permlane32_swap_b32 v{tb}, v{tb+2}', R('v', tb, 1) + R('v', tb + 2, 1), R('v', tb, 1) + R('v', tb + 2, 1), prev, 'perm'))
        r.append(valu(f'v_permlane32_swap_b32 v{tb+1}, v{tb+3}', R('v', tb + 1, 1) + R('v', tb + 3, 1), R('v', tb + 1, 1) + R('v', tb + 3, 1), prev, 'perm'))
        r.append(I(f'buffer_store_dwordx4 {rr("v",tb,4)}, v{VST}, s[{sO}:{sO+3}], s{soff} offen offset:{db*64+hf*32}', 'st', [], R('v', tb, 4) + [f'v{VST}'], prev=prev, tag=('st',)))
    return r
def maxpro(q):
    s = S[q]; a, b = MT[q], NMC[q]
    m3 = lambda d, x, y, z: valu(f'v_max3_f32 v{d}, v{x}, v{y}, v{z}', [f'v{d}'], [f'v{x}', f'v{y}', f'v{z}'])
    r = [m3(a, s, s+1, s+2), m3(b, s+3, s+4, s+5), m3(a, a, s+6, s+7), m3(b, b, s+8, s+9), m3(a, a, s+10, s+11), m3(b, b, s+12, s+13),
         m3(a, a, s+14, s+15), valu(f'v_max_f32 v{a}, v{a}, v{b}', [f'v{a}'], [f'v{a}', f'v{b}']),
         valu(f'v_mov_b32 v{b}, v{a}', [f'v{b}'], [f'v{a}']), I('s_nop 1', 'nop'),
         valu(f'v_permlane32_swap_b32 v{a}, v{b}', [f'v{a}', f'v{b}'], [f'v{a}', f'v{b}'], k='perm'), I('s_nop 1', 'nop'),
         valu(f'v_max_f32 v{a}, v{a}, v{b}', [f'v{a}'], [f'v{a}', f'v{b}']),
         valu(f'v_mul_f32 v{b}, s{sNegC}, v{a}', [f'v{b}'], [f'v{a}'])]
    return r

def build_block():
    NG = 512
    gaps = [[] for _ in range(NG)]
    slots = [None] * NG
    def put(g, ins, prio):
        prev = g >= NG
        if prev:
            ins.prev = True; g -= NG
        gaps[g].append((prio, len(gaps[g]), ins))
    for j in range(16):
        b = 32 * j
        for t in range(8):
            slots[b + t] = mfma(S[0], ('a', AK + 4 * t), ('a', AQ[0] + 4 * t), c0=(t == 0))
            slots[b + 16 + t] = mfma(S[1], ('a', AK + 4 * t), ('a', AQ[1] + 4 * t), c0=(t == 0))
        for f in range(8):
            u, db = f >> 2, f & 3
            slots[b + 24 + f] = mfma(O[0] + 16 * db, ('a', AV + 4 * f), ('v', P[0] + 4 * u), c0=(j == 0 and u == 0))
            g = b + 40 + f
            m = mfma(O[1] + 16 * db, ('a', AV + 4 * f), ('v', P[1] + 4 * u), c0=(j == 0 and u == 0), prev=(g >= NG))
            slots[g % NG] = m
        for q in range(2):
            g0 = b + 9 + 16 * q; s = S[q]
            if j == 0:
                for x in maxpro(q): put(g0, x, 1)
            for r in range(16):
                put(g0 + r, valu(f'v_fma_f32 v{s+r}, v{s+r}, s{sC}, v{NMC[q]}', [f'v{s+r}'], [f'v{s+r}', f'v{NMC[q]}']), 2)
                put(g0 + r + 1, valu(f'v_exp_f32 v{s+r}, v{s+r}', [f'v{s+r}'], [f'v{s+r}'], k='trans'), 3)
                if j == 0 and r == 0:
                    put(g0 + r + 2, valu(f'v_mov_b32 v{L[q]}, v{s}', [f'v{L[q]}'], [f'v{s}']), 4)
                else:
                    put(g0 + r + 2, valu(f'v_add_f32 v{L[q]}, v{L[q]}, v{s+r}', [f'v{L[q]}'], [f'v{L[q]}', f'v{s+r}']), 4)
            for k in range(8):
                put(g0 + 3 + 2 * k, valu(f'v_cvt_pk_bf16_f32 v{P[q]+k}, v{s+2*k}, v{s+2*k+1}', [f'v{P[q]+k}'], [f'v{s+2*k}', f'v{s+2*k+1}']), 5)
        for k in range(16): put(b + 9 + k, vread(k >> 1, k & 1, (4 + j) % 10), 0)
        for t in range(8): put(b + 24 + t, kread(t, (4 + j + 1 + (4 if j == 15 else 0)) % 10), 0)
        need = 4 + j + 1 + (4 if j == 15 else 0)
        put(b, I('WAITVM', 'waitvm', tag=need), -2); put(b, I('s_barrier', 'bar'), -1)
        grp = [g for s_ in SCHED[j] for g in dma_slot(s_)]
        for i, g in enumerate(grp):
            for x in g: put(b + 1 + i, x, 0)
    b = 32 * 15
    for t in range(8):
        put(b + 2 + t // 2, valu(f'v_add_u32 v{T+t}, s{sW8192}, v{KA+t}', [f'v{T+t}'], [f'v{KA+t}']), 6)
        put(b + 8 + t, I(f'ds_read_b128 {rr("a",AQ[0]+4*t,4)}, v{T+t}', 'ds', R('a', AQ[0] + 4 * t, 4), [f'v{T+t}']), 0)
        put(b + 16 + t // 2, valu(f'v_add_u32 v{T+8+t}, s{sW8192}, v{KB+t}', [f'v{T+8+t}'], [f'v{KB+t}']), 6)
        put(b + 24 + t, I(f'ds_read_b128 {rr("a",AQ[1]+4*t,4)}, v{T+8+t} offset:16384', 'ds', R('a', AQ[1] + 4 * t, 4), [f'v{T+8+t}']), 0)
    for x in lfin(0, sBit0, False): put(b + 28, x, 7)
    for x in lfin(1, sBit1, True): put(NG + 11, x, 7)
    for db in range(4):
        ins = oepi(0, db, sOprev, True); g0 = NG + 1 + 6 * db - (1 if db else 0); n = 6 if db else 5
        for i, x in enumerate(ins): put(g0 + i * n // len(ins), x, 8)
        ins = oepi(1, db, sOprev1, True); g0 = NG + 24 + 4 * db
        for i, x in enumerate(ins): put(g0 + i * 4 // len(ins), x, 8)
    out = []
    for g in range(NG):
        out.append(slots[g])
        for _, _, x in sorted(gaps[g], key=lambda e: (e[0], e[1])): out.append(x)
        if g == 47:
            pass
    return out

def add_waits(seq, passes):
    out = []; ds = []; vm = []
    for ins in seq:
        if ins.k == 'waitvm':
            n = None
            for i in range(len(vm) - 1, -1, -1):
                if vm[i] is not None and vm[i][0] == 'slot' and vm[i][1] % 20 == ins.tag % 20:
                    n = len(vm) - 1 - i; break
            if n is None: n = 0
            w = I(f's_waitcnt vmcnt({min(n,63)})', 'wait', tag=('vm', ins, n), prev=ins.prev); out.append(w); continue
        touched = ins.u | ins.d
        need = None
        for i, (pos, dst) in enumerate(ds):
            if dst & touched: need = i
        if need is not None:
            n = len(ds) - 1 - need
            recent = sum(1 for (pos, dst) in ds if pos > len(out) - CFG['lgk_window'])
            n = min(n, recent, 15)
            out.append(I(f's_waitcnt lgkmcnt({n})', 'wait', tag=('lgkm', ins, n), prev=ins.prev))
            ds = ds[len(ds) - n:] if n else []
        out.append(ins)
        if ins.k == 'ds': ds.append((len(out), ins.d))
        if ins.k in ('vm', 'st'): vm.append(ins.tag)
        if ins.k == 'bar': pass
    return out

def states(x):
    if x.k == 'nop': return int(x.t.split()[1]) + 1
    return 1
def fix_hazards(seq, name):
    out = []; added = 0
    for ins in seq:
        if ins.k in ('label',): out.append(ins); continue
        req = 0; dist = 0
        for p in reversed(out):
            if dist >= 13: break
            if p.k == 'label': continue
            need = 0
            if p.k == 'mfma':
                if ins.k == 'mfma':
                    ab = ins.u
                    if p.d & ab: need = 12
                    elif (p.d & ins.c) and p.d != ins.c: need = 10
                    elif (p.d & ins.d) and not (p.d == ins.d and ins.c): need = 12
                elif ins.k in ('valu', 'trans', 'perm', 'st', 'ds', 'vm'):
                    if p.d & (ins.u | ins.d): need = 12
                    elif ins.k in ('valu', 'trans', 'perm') and (p.c & ins.d): need = 7
            elif p.k in ('valu', 'trans', 'perm'):
                if ins.k == 'mfma' and (p.d & (ins.u | ins.c)): need = 2
                if ins.k == 'perm' and (p.d & ins.u): need = max(need, 2)
                if p.k == 'trans' and ins.k in ('valu', 'perm', 'mfma', 'st') and (p.d & ins.u): need = max(need, 1)
                if p.k == 'perm' and (p.d & ins.u): need = max(need, 1)
            elif p.k == 'st':
                if ins.k in ('valu', 'trans', 'perm') and (p.u & ins.d): need = 2
            elif p.k == 'salu' and 'm0' in p.t.split(',')[0] and ins.k == 'vm': need = 1
            req = max(req, need - dist)
            dist += states(p)
        if req > 0:
            out.append(I(f's_nop {req-1}', 'nop', prev=ins.prev)); added += 1
        out.append(ins)
    if added: print(f'; hazard nops added in {name}: {added}', file=sys.stderr)
    return out

def prologue_text():
    A = []; e = A.append
    e('s_cmp_ge_u32 s2, 256'); e('s_cbranch_scc1 L_end')
    e('s_load_dwordx4 s[4:7], s[0:1], 0'); e('s_load_dwordx4 s[48:51], s[0:1], 16')
    e('v_lshrrev_b32 v1, 6, v0'); e('v_and_b32 v0, 63, v0'); e('s_nop 0'); e(f'v_readfirstlane_b32 s{sWv}, v1')
    e('v_and_b32 v2, 31, v0'); e('v_lshrrev_b32 v3, 5, v0')
    e('v_and_b32 v4, 15, v2')
    for t in range(8):
        e(f'v_add_u32 v5, {2*t}, v3'); e('v_xor_b32 v5, v5, v4'); e('v_lshlrev_b32 v5, 4, v5')
        e(f'v_lshl_add_u32 v{KA+t}, v2, 8, v5'); e(f'v_add_u32 v{KB+t}, 0x10000, v{KA+t}')
    e('v_bfe_u32 v4, v0, 2, 2')
    e('v_lshl_add_u32 v5, v3, 2, v4')
    e('v_lshlrev_b32 v5, 8, v5')
    e('v_bfe_u32 v6, v0, 4, 1'); e('v_lshl_add_u32 v5, v6, 5, v5')
    e('v_and_b32 v6, 3, v0'); e('v_lshl_add_u32 v5, v6, 3, v5')
    for db in range(4):
        e(f'v_xor_b32 v6, {db}, v4'); e('v_lshl_add_u32 v6, v6, 6, v5')
        e(f'v_add_u32 v{VB+db}, 0x10000, v6'); e(f'v_add_u32 v{VC+db}, 0x20000, v6')
    e(f's_lshl_b32 s{sW2048}, s{sWv}, 11'); e(f's_lshl_b32 s{sW8192}, s{sWv}, 13')
    e('v_lshrrev_b32 v4, 4, v0'); e(f's_lshl_b32 s{sT}, s{sWv}, 3'); e(f'v_add_u32 v5, s{sT}, v4')
    e('v_and_b32 v6, 15, v0')
    e('v_and_b32 v7, 15, v5'); e('v_xor_b32 v7, v7, v6'); e('v_lshlrev_b32 v7, 4, v7'); e(f'v_lshl_add_u32 v{DK0}, v5, 8, v7')
    e('v_add_u32 v7, 4, v5'); e('v_and_b32 v7, 15, v7'); e('v_xor_b32 v7, v7, v6'); e('v_lshlrev_b32 v7, 4, v7'); e(f'v_lshl_add_u32 v{DK1}, v5, 8, v7')
    e('v_lshlrev_b32 v7, 2, v4'); e('v_xor_b32 v7, v7, v6'); e('v_lshlrev_b32 v7, 4, v7'); e(f'v_lshl_add_u32 v{DV}, v5, 8, v7')
    e(f's_lshl_b32 s{sT}, s{sWv}, 14'); e('v_lshlrev_b32 v7, 8, v2'); e('v_lshl_add_u32 v7, v3, 4, v7'); e(f'v_add_u32 v{VST}, s{sT}, v7')
    if CFG['pairmode'] == 1:
        e('s_lshr_b32 s3, s2, 4'); e('s_lshl_b32 s3, s3, 3'); e(f's_and_b32 s{sT}, s2, 7'); e(f's_add_u32 s3, s3, s{sT}')
        e(f's_lshr_b32 s{sHalf}, s2, 3'); e(f's_and_b32 s{sHalf}, s{sHalf}, 1')
    else:
        e('s_lshr_b32 s3, s2, 1'); e(f's_and_b32 s{sHalf}, s2, 1')
    e(f's_lshl_b32 s{sHalf}, s{sHalf}, 16')
    e(f's_lshl_b32 s{sHead0}, s3, 17')
    e(f's_mov_b32 s{sHead}, s{sHead0}'); e(f's_add_u32 s{sHeadN}, s{sHead0}, 0x1000000')
    e(f's_add_u32 s{sQN}, s{sHead0}, s{sHalf}')
    e(f's_mov_b32 s{sOprev}, {OOB:#x}'); e(f's_mov_b32 s{sOprev1}, {OOB:#x}')
    e(f's_mov_b32 s{sB}, 0'); e(f's_mov_b32 s{sBad}, 0'); e(f's_mov_b32 s{sBit0}, 1'); e(f's_mov_b32 s{sBit1}, 0')
    e(f's_mov_b32 s{sC}, {fbits(cval):#x}'); e(f's_mov_b32 s{sNegC}, {fbits(-cval):#x}')
    thr = -1.0 if CFG['force_slow'] else 2.0 ** CFG['thr_log2']
    e(f's_mov_b32 s{sThr}, {fbits(thr):#x}')
    e('s_waitcnt lgkmcnt(0)')
    for srd, lo in ((sQ, 4), (sK, 6), (sV, 48), (sO, 50)):
        e(f's_mov_b32 s{srd}, s{lo}'); e(f's_and_b32 s{srd+1}, s{lo+1}, 0xffff'); e(f's_mov_b32 s{srd+2}, 0x4000000'); e(f's_mov_b32 s{srd+3}, 0x20000')
    return [I(t, 'text') for t in A]

def prologue_seq():
    seq = []
    for s in range(9):
        for g in dma_slot(s): seq += g
    seq.append(salu(f's_add_u32 s{sQN}, s{sHeadN}, s{sHalf}'))
    seq.append(I('WAITVM', 'waitvm', tag=4)); seq.append(I('s_barrier', 'bar'))
    for t in range(8):
        seq.append(valu(f'v_add_u32 v{T+t}, s{sW8192}, v{KA+t}', [f'v{T+t}'], [f'v{KA+t}']))
        seq.append(valu(f'v_add_u32 v{T+8+t}, s{sW8192}, v{KB+t}', [f'v{T+8+t}'], [f'v{KB+t}']))
    for t in range(8):
        seq.append(I(f'ds_read_b128 {rr("a",AQ[0]+4*t,4)}, v{T+t}', 'ds', R('a', AQ[0] + 4 * t, 4), [f'v{T+t}']))
        seq.append(kread(t, 4))
    for t in range(8):
        seq.append(I(f'ds_read_b128 {rr("a",AQ[1]+4*t,4)}, v{T+8+t} offset:16384', 'ds', R('a', AQ[1] + 4 * t, 4), [f'v{T+8+t}']))
    return seq

def blockend():
    return [salu(f's_add_u32 s{sOprev}, s{sHead}, s{sHalf}'), salu(f's_add_u32 s{sOprev1}, s{sOprev}, 8192'),
            salu(f's_mov_b32 s{sHead}, s{sHeadN}'),
            salu(f's_add_u32 s{sB}, s{sB}, 1'),
            salu(f's_add_u32 s{sHeadN}, s{sHeadN}, 0x1000000'),
            salu(f's_cmp_ge_u32 s{sB}, 3'), salu(f's_cselect_b32 s{sHeadN}, {OOB:#x}, s{sHeadN}'),
            salu(f's_add_u32 s{sQN}, s{sHeadN}, s{sHalf}'),
            salu(f's_lshl_b32 s{sT2}, s{sB}, 1'),
            salu(f's_lshl_b32 s{sBit0}, 1, s{sT2}'), salu(f's_lshr_b32 s{sBit1}, s{sBit0}, 1'),
            salu(f's_cmp_lt_u32 s{sB}, 4')]

def slow_text():
    A = []; e = A.append
    e('s_waitcnt vmcnt(0) lgkmcnt(0)'); e('s_barrier')
    e(f's_cmp_eq_u32 s{sBad}, 0'); e('s_cbranch_scc1 L_end')
    G = T; M = MT[0]; N = NMC[0]; Ls = L[0]; s = S[0]; VT = T + 4
    e(f'v_subrev_u32 v{T+8}, s{sW2048}, v{DV}')
    for db in range(4): e(f'v_add_u32 v{VT+db}, s{sW8192}, v{VB+db}')
    e(f's_lshl_b32 s{sT2}, s{sWv}, 14')
    e(f'v_subrev_u32 v{G}, s{sT2}, v{VST}')
    e(f's_mov_b32 s{sIdx}, 0')
    e('L_slow_loop:')
    e(f's_lshr_b32 s{sT}, s{sBad}, s{sIdx}'); e(f's_and_b32 s{sT}, s{sT}, 1'); e(f's_cmp_eq_u32 s{sT}, 0'); e('s_cbranch_scc1 L_slow_next')
    e(f's_lshr_b32 s{sT}, s{sIdx}, 1'); e(f's_lshl_b32 s{sT}, s{sT}, 24'); e(f's_add_u32 s{sHead}, s{sHead0}, s{sT}')
    e(f's_and_b32 s{sT}, s{sIdx}, 1'); e(f's_lshl_b32 s{sT}, s{sT}, 13'); e(f's_add_u32 s{sOcur}, s{sHead}, s{sHalf}'); e(f's_add_u32 s{sOcur}, s{sOcur}, s{sT}')
    e(f's_lshl_b32 s{sT}, s{sWv}, 14'); e(f's_add_u32 s{sT}, s{sT}, s{sOcur}')
    for t in range(8): e(f'buffer_load_dwordx4 {rr("a",AQ[0]+4*t,4)}, v{G}, s[{sQ}:{sQ+3}], s{sT} offen offset:{32*t}')
    e(f'v_mov_b32 v{M}, 0xff800000')
    def ktile():
        e(f's_lshl_b32 s{sT}, s{sTile}, 13'); e(f's_add_u32 s{sT}, s{sT}, s{sHead}')
        for t in range(8): e(f'buffer_load_dwordx4 {rr("a",AK+4*t,4)}, v{G}, s[{sK}:{sK+3}], s{sT} offen offset:{32*t}')
    def qk():
        e('s_waitcnt vmcnt(0)')
        for t in range(8): e(mfma(s, ('a', AK + 4 * t), ('a', AQ[0] + 4 * t), c0=(t == 0)).t)
        e('s_nop 15')
    e(f's_mov_b32 s{sTile}, 0'); e('L_slow_p1:')
    ktile(); qk()
    for r in range(0, 16, 2): e(f'v_max3_f32 v{M}, v{M}, v{s+r}, v{s+r+1}')
    e(f's_add_u32 s{sTile}, s{sTile}, 1'); e(f's_cmp_lt_u32 s{sTile}, 16'); e('s_cbranch_scc1 L_slow_p1')
    e(f'v_mov_b32 v{N}, v{M}'); e('s_nop 1'); e(f'v_permlane32_swap_b32 v{M}, v{N}'); e('s_nop 1'); e(f'v_max_f32 v{M}, v{M}, v{N}')
    e(f'v_mul_f32 v{N}, s{sNegC}, v{M}'); e(f'v_mov_b32 v{Ls}, 0')
    for r in range(64): e(f'v_mov_b32 v{O[0]+r}, 0')
    e(f's_mov_b32 s{sTile}, 0'); e('L_slow_p2:')
    ktile()
    e(f's_add_u32 m0, s{sW8192}, 81920'); e('s_nop 0')
    for p in range(4): e(f'buffer_load_dwordx4 v{T+8}, s[{sV}:{sV+3}], s{sT} offen offset:{1024*p} lds')
    e(f's_add_u32 m0, s{sW8192}, {81920+4096}'); e(f's_add_u32 s{sT}, s{sT}, 4096')
    for p in range(4): e(f'buffer_load_dwordx4 v{T+8}, s[{sV}:{sV+3}], s{sT} offen offset:{1024*p} lds')
    qk()
    for r in range(16): e(f'v_fma_f32 v{s+r}, v{s+r}, s{sC}, v{N}')
    for r in range(16): e(f'v_exp_f32 v{s+r}, v{s+r}')
    e('s_nop 0')
    for r in range(16): e(f'v_add_f32 v{Ls}, v{Ls}, v{s+r}')
    for k in range(8): e(f'v_cvt_pk_bf16_f32 v{P[0]+k}, v{s+2*k}, v{s+2*k+1}')
    for f in range(8):
        for sec in range(2):
            e(f'ds_read_b64_tr_b16 {rr("a",AV+4*f+2*sec,2)}, v{VT+(f&3)} offset:{16384+(f>>2)*4096+sec*2048}')
    e('s_waitcnt lgkmcnt(0)')
    for f in range(8): e(mfma(O[0] + 16 * (f & 3), ('a', AV + 4 * f), ('v', P[0] + 4 * (f >> 2))).t)
    e(f's_add_u32 s{sTile}, s{sTile}, 1'); e(f's_cmp_lt_u32 s{sTile}, 16'); e('s_cbranch_scc1 L_slow_p2')
    e('s_nop 15')
    e(f'v_mov_b32 v{M}, v{Ls}'); e('s_nop 1'); e(f'v_permlane32_swap_b32 v{Ls}, v{M}'); e('s_nop 1'); e(f'v_add_f32 v{Ls}, v{Ls}, v{M}')
    e(f'v_rcp_f32 v{INV[0]}, v{Ls}'); e('s_nop 1')
    sv = CFG.get('_x')
    seq = []
    global T_save
    for db in range(4): seq += oepi_slow(db)
    for x in fix_hazards(seq, 'slow-epi'): e(x.t)
    e('s_waitcnt vmcnt(0)')
    e('L_slow_next:')
    e(f's_add_u32 s{sIdx}, s{sIdx}, 1'); e(f's_cmp_lt_u32 s{sIdx}, 8'); e('s_cbranch_scc1 L_slow_loop')
    return [I(t, 'text') for t in A]
def oepi_slow(db):
    global T
    sv = T; T = S[1]
    r = oepi(0, db, sOcur, False); T = sv
    return r

def main():
    blk = build_block()
    pro = prologue_seq()
    be = blockend()
    full = add_waits(pro + blk + be + blk + be, 1)
    idx = [i for i, x in enumerate(full) if x is be[-1]]
    first = next(i for i, x in enumerate(full) if x is blk[0] or (x.k == 'wait' and x.tag[1] is blk[0]))
    pro_w = full[:first]; b1 = full[first:idx[0] + 1]; b2 = full[idx[0] + 1:idx[1] + 1]
    def wmap(b):
        m = {}
        for x in b:
            if x.k == 'wait': m[(x.tag[0], id(x.tag[1]))] = x.tag[2]
        return m
    m1, m2 = wmap(b1), wmap(b2)
    body = []
    for x in blk + be:
        if x.k == 'waitvm':
            n = min(m1[('vm', id(x))], m2[('vm', id(x))]); body.append(I(f's_waitcnt vmcnt({min(n,63)})', 'wait', prev=x.prev)); continue
        c = [m[('lgkm', id(x))] for m in (m1, m2) if ('lgkm', id(x)) in m]
        if c: body.append(I(f's_waitcnt lgkmcnt({min(c)})', 'wait', prev=x.prev))
        body.append(x)
    mark = I('L_loop:', 'label')
    two = fix_hazards(pro_w + [mark] + body, 'first')
    k = two.index(mark); pro_f = two[:k]
    mark2 = I('', 'label')
    two2 = fix_hazards(body + [mark2] + body, 'steady')
    body_f = two2[two2.index(mark2) + 1:]
    body_1 = two[k + 1:]
    assert len(body_f) >= len(body_1) - 2, (len(body_f), len(body_1))
    tail = [x for x in blk if x.prev and x.k not in ('waitvm',)]
    tail_w = add_waits([x for x in blk[-80:]if x.k in ('ds',)] + tail, 1)
    tail_w = [x for x in tail_w if x.k not in ('ds',)]
    mark3 = I('', 'label')
    t2 = fix_hazards(body[-60:] + [mark3] + [I('s_waitcnt lgkmcnt(0)', 'wait')] + tail_w, 'tail')
    tail_f = t2[t2.index(mark3) + 1:]
    out = []
    hdr = open('standalone__gqa_softmax__near_ridge.s.ref').read().split('\n')
    name = 'standalone__gqa_softmax__near_ridge_kernel'
    for ln in hdr:
        if ln.startswith('; @launch'): out.append('; @launch grid=(256,1,1) block=(256,1,1) lds=163840')
        elif ln.startswith(';'): out.append(ln)
        else: break
    out += ['.amdgcn_target "amdgcn-amd-amdhsa--gfx950"', '.text', f'.globl {name}', '.p2align 8', f'.type {name},@function', f'{name}:']
    out += [x.t for x in prologue_text()]
    out += [x.t for x in pro_f]
    out.append('s_nop 0' if CFG.get('pad') else '.p2align 3' if False else '')
    out.append('L_loop:')
    out += [x.t for x in body_f]
    out.append('s_cbranch_scc1 L_loop')
    out += [x.t for x in tail_f]
    out += [x.t for x in slow_text()]
    out += ['L_end:', 's_endpgm', '.section .rodata,"a"', '.p2align 6', f'.amdhsa_kernel {name}',
            '  .amdhsa_next_free_vgpr 384', '  .amdhsa_next_free_sgpr 102', '  .amdhsa_accum_offset 256',
            '  .amdhsa_group_segment_fixed_size 0', '  .amdhsa_kernarg_size 48', '  .amdhsa_user_sgpr_count 2',
            '  .amdhsa_user_sgpr_kernarg_segment_ptr 1', '  .amdhsa_system_sgpr_workgroup_id_x 1', '.end_amdhsa_kernel']
    open(sys.argv[1], 'w').write('\n'.join(o for o in out if o != '') + '\n')
    n = lambda k: sum(1 for x in body_f if x.k == k)
    print('body instrs', len(body_f), {k: n(k) for k in ('mfma', 'valu', 'trans', 'perm', 'ds', 'vm', 'st', 'salu', 'wait', 'nop', 'bar')}, file=sys.stderr)
main()
```

```python
import sys, struct, math
CFG = dict(stamps=0, stampwg=0, force_slow=0, thr_log2=30, lgk_window=18, pairmode=1)
for a in sys.argv[2:]:
    k, v = a.split('='); CFG[k] = int(v)

class I:
    __slots__ = ('t', 'k', 'd', 'u', 'tag', 'prev', 'c')
    def __init__(s, t, k, d=(), u=(), tag=None, prev=False, c=()):
        s.t = t; s.k = k; s.d = set(d); s.u = set(u); s.tag = tag; s.prev = prev; s.c = set(c)
def R(p, a, n=1): return [f'{p}{a+i}' for i in range(n)]
def rr(p, a, n): return f'{p}[{a}:{a+n-1}]' if n > 1 else f'{p}{a}'

O = [0, 64]; S = [128, 144]; P = [160, 168]
KA = 176; KB = 184; VB = 192; VC = 196
DK0 = 200; DK1 = 201; DV = 202; VST = 203
L = [204, 205]; INV = [206, 207]; NMC = [208, 209]; MT = [210, 211]
T = 212
AQ = [0, 32]; AK = 64; AV = 96
sQ, sK, sV, sO = 8, 12, 16, 20
sW2048 = 24; sW8192 = 25; sHead = 26; sHeadN = 27; sQN = 28; sOprev = 29; sT = 30; sB = 31
sC = 32; sNegC = 33; sBad = 34; sBit0 = 35; sBit1 = 36; sT2 = 37; sHalf = 38; sOprev1 = 39; sThr = 40
sHead0 = 41; sIdx = 42; sTile = 43; sT3 = 44; sOcur = 45; sWv = 46
OOB = 0x40000000
cval = math.log2(math.e) / math.sqrt(128.0)
def fbits(x): return struct.unpack('<I', struct.pack('<f', x))[0]

def mfma(dst, a, b, c0=False, prev=False):
    ctext = '0' if c0 else rr('v', dst, 16)
    return I(f'v_mfma_f32_32x32x16_bf16 {rr("v",dst,16)}, {rr(a[0],a[1],4)}, {rr(b[0],b[1],4)}, {ctext}', 'mfma',
             R('v', dst, 16), R(a[0], a[1], 4) + R(b[0], b[1], 4), prev=prev, c=([] if c0 else R('v', dst, 16)))
def valu(t, d, u, prev=False, k='valu'): return I(t, k, d, u, prev=prev)
def salu(t, prev=False): return I(t, 'salu', prev=prev)

def kaddr(pos):
    return (KA, pos * 8192) if pos < 8 else (KB, (pos - 8) * 8192)
def vaddr(pos):
    return (VB, 16384 + pos * 8192) if pos < 6 else (VC, (pos - 6) * 8192)
def kread(t, pos):
    b, o = kaddr(pos)
    return I(f'ds_read_b128 {rr("a",AK+4*t,4)}, v{b+t} offset:{o}', 'ds', R('a', AK + 4 * t, 4), [f'v{b+t}'])
def vread(f, sec, pos):
    u, db = f >> 2, f & 3
    b, o = vaddr(pos)
    return I(f'ds_read_b64_tr_b16 {rr("a",AV+4*f+2*sec,2)}, v{b+db} offset:{o+u*4096+sec*2048}', 'ds',
             R('a', AV + 4 * f + 2 * sec, 2), [f'v{b+db}'])
def dma_slot(s):
    pos = s % 10; nb = s >= 20; ss = s % 20
    kb = pos * 8192; vb = 81920 + pos * 8192
    def ld(v, srd, off, tag): return I(f'buffer_load_dwordx4 v{v}, s[{srd}:{srd+3}], s{sT} offen offset:{off} lds', 'vm', [], [f'v{v}'], tag=tag)
    tag = ('slot', s)
    if ss < 4:
        base = sQN if nb else None
        assert nb or s < 4
        src = sQN
        g = [[salu(f's_add_u32 s{sT}, s{src}, {ss*16384}'), salu(f's_add_u32 m0, s{sW2048}, {kb}'), I('s_nop 0', 'nop'), ld(DK0, sQ, 0, tag)],
             [ld(DK1, sQ, 1024, tag)],
             [salu(f's_add_u32 s{sT}, s{src}, {ss*16384+8192}'), salu(f's_add_u32 m0, s{sW2048}, {vb}'), I('s_nop 0', 'nop'), ld(DK0, sQ, 0, tag)],
             [ld(DK1, sQ, 1024, tag)]]
    else:
        src = sHeadN if nb else sHead
        tile = ss - 4
        g = [[salu(f's_add_u32 m0, s{sW2048}, {kb}'), salu(f's_add_u32 s{sT}, s{src}, {tile*8192}'), ld(DK0, sK, 0, tag)],
             [ld(DK1, sK, 1024, tag)],
             [salu(f's_add_u32 m0, s{sW2048}, {vb}'), I('s_nop 0', 'nop'), ld(DV, sV, 0, tag)],
             [ld(DV, sV, 1024, tag)]]
    return g
SCHED = {0: [9], 1: [10, 11], 2: [12, 13], 3: [14, 15], 4: [16, 17], 5: [18], 6: [19]}
for j in range(7, 16): SCHED[j] = [13 + j]

def lfin(q, bit, prev):
    l, inv, t = L[q], INV[q], MT[q]
    return [valu(f'v_mov_b32 v{t}, v{l}', [f'v{t}'], [f'v{l}'], prev), I('s_nop 1', 'nop', prev=prev),
            valu(f'v_permlane32_swap_b32 v{l}, v{t}', [f'v{l}', f'v{t}'], [f'v{l}', f'v{t}'], prev, 'perm'),
            I('s_nop 1', 'nop', prev=prev),
            valu(f'v_add_f32 v{l}, v{l}, v{t}', [f'v{l}'], [f'v{l}', f'v{t}'], prev),
            valu(f'v_rcp_f32 v{inv}, v{l}', [f'v{inv}'], [f'v{l}'], prev, 'trans'),
            valu(f'v_cmp_nle_f32 vcc, v{l}, v{NMC[q]+0}' if False else f'v_cmp_nge_f32 vcc, s{sThr}, v{l}', [], [f'v{l}'], prev),
            I('s_nop 3', 'nop', prev=prev),
            salu(f's_cmp_lg_u64 vcc, 0', prev), salu(f's_cselect_b32 s{sT2}, s{bit}, 0', prev),
            salu(f's_or_b32 s{sBad}, s{sBad}, s{sT2}', prev)]
def oepi(q, db, soff, prev):
    o = O[q] + 16 * db; inv = INV[q]; r = []
    for hf in range(2):
        tb = T + 8 * hf
        for i in range(8):
            r.append(valu(f'v_mul_f32 v{tb+i}, v{o+8*hf+i}, v{inv}', [f'v{tb+i}'], [f'v{o+8*hf+i}', f'v{inv}'], prev))
        for i in range(4):
            r.append(valu(f'v_cvt_pk_bf16_f32 v{tb+i}, v{tb+2*i}, v{tb+2*i+1}', [f'v{tb+i}'], [f'v{tb+2*i}', f'v{tb+2*i+1}'], prev))
        r.append(I('s_nop 0', 'nop', prev=prev))
        r.append(valu(f'v_permlane32_swap_b32 v{tb}, v{tb+2}', R('v', tb, 1) + R('v', tb + 2, 1), R('v', tb, 1) + R('v', tb + 2, 1), prev, 'perm'))
        r.append(valu(f'v_permlane32_swap_b32 v{tb+1}, v{tb+3}', R('v', tb + 1, 1) + R('v', tb + 3, 1), R('v', tb + 1, 1) + R('v', tb + 3, 1), prev, 'perm'))
        r.append(I(f'buffer_store_dwordx4 {rr("v",tb,4)}, v{VST}, s[{sO}:{sO+3}], s{soff} offen offset:{db*64+hf*32}', 'st', [], R('v', tb, 4) + [f'v{VST}'], prev=prev, tag=('st',)))
    return r
def maxpro(q):
    s = S[q]; a, b = MT[q], NMC[q]
    m3 = lambda d, x, y, z: valu(f'v_max3_f32 v{d}, v{x}, v{y}, v{z}', [f'v{d}'], [f'v{x}', f'v{y}', f'v{z}'])
    r = [m3(a, s, s+1, s+2), m3(b, s+3, s+4, s+5), m3(a, a, s+6, s+7), m3(b, b, s+8, s+9), m3(a, a, s+10, s+11), m3(b, b, s+12, s+13),
         m3(a, a, s+14, s+15), valu(f'v_max_f32 v{a}, v{a}, v{b}', [f'v{a}'], [f'v{a}', f'v{b}']),
         valu(f'v_mov_b32 v{b}, v{a}', [f'v{b}'], [f'v{a}']), I('s_nop 1', 'nop'),
         valu(f'v_permlane32_swap_b32 v{a}, v{b}', [f'v{a}', f'v{b}'], [f'v{a}', f'v{b}'], k='perm'), I('s_nop 1', 'nop'),
         valu(f'v_max_f32 v{a}, v{a}, v{b}', [f'v{a}'], [f'v{a}', f'v{b}']),
         valu(f'v_mul_f32 v{b}, s{sNegC}, v{a}', [f'v{b}'], [f'v{a}'])]
    return r

def build_block():
    NG = 512
    gaps = [[] for _ in range(NG)]
    slots = [None] * NG
    def put(g, ins, prio):
        prev = g >= NG
        if prev:
            ins.prev = True; g -= NG
        gaps[g].append((prio, len(gaps[g]), ins))
    for j in range(16):
        b = 32 * j
        for t in range(8):
            slots[b + t] = mfma(S[0], ('a', AK + 4 * t), ('a', AQ[0] + 4 * t), c0=(t == 0))
            slots[b + 16 + t] = mfma(S[1], ('a', AK + 4 * t), ('a', AQ[1] + 4 * t), c0=(t == 0))
        for f in range(8):
            u, db = f >> 2, f & 3
            slots[b + 24 + f] = mfma(O[0] + 16 * db, ('a', AV + 4 * f), ('v', P[0] + 4 * u), c0=(j == 0 and u == 0))
            g = b + 40 + f
            m = mfma(O[1] + 16 * db, ('a', AV + 4 * f), ('v', P[1] + 4 * u), c0=(j == 0 and u == 0), prev=(g >= NG))
            slots[g % NG] = m
        for q in range(2):
            g0 = b + 9 + 16 * q; s = S[q]
            if j == 0:
                for x in maxpro(q): put(g0, x, 1)
            for r in range(16):
                put(g0 + r, valu(f'v_fma_f32 v{s+r}, v{s+r}, s{sC}, v{NMC[q]}', [f'v{s+r}'], [f'v{s+r}', f'v{NMC[q]}']), 2)
                put(g0 + r + 1, valu(f'v_exp_f32 v{s+r}, v{s+r}', [f'v{s+r}'], [f'v{s+r}'], k='trans'), 3)
                if j == 0 and r == 0:
                    put(g0 + r + 2, valu(f'v_mov_b32 v{L[q]}, v{s}', [f'v{L[q]}'], [f'v{s}']), 4)
                else:
                    put(g0 + r + 2, valu(f'v_add_f32 v{L[q]}, v{L[q]}, v{s+r}', [f'v{L[q]}'], [f'v{L[q]}', f'v{s+r}']), 4)
            for k in range(8):
                put(g0 + 3 + 2 * k, valu(f'v_cvt_pk_bf16_f32 v{P[q]+k}, v{s+2*k}, v{s+2*k+1}', [f'v{P[q]+k}'], [f'v{s+2*k}', f'v{s+2*k+1}']), 5)
        for k in range(16): put(b + 9 + k, vread(k >> 1, k & 1, (4 + j) % 10), 0)
        for t in range(8): put(b + 24 + t, kread(t, (4 + j + 1 + (4 if j == 15 else 0)) % 10), 0)
        need = 4 + j + 1 + (4 if j == 15 else 0)
        put(b, I('WAITVM', 'waitvm', tag=need), -2); put(b, I('s_barrier', 'bar'), -1)
        grp = [g for s_ in SCHED[j] for g in dma_slot(s_)]
        for i, g in enumerate(grp):
            for x in g: put(b + 1 + i, x, 0)
    b = 32 * 15
    for t in range(8):
        put(b + 2 + t // 2, valu(f'v_add_u32 v{T+t}, s{sW8192}, v{KA+t}', [f'v{T+t}'], [f'v{KA+t}']), 6)
        put(b + 8 + t, I(f'ds_read_b128 {rr("a",AQ[0]+4*t,4)}, v{T+t}', 'ds', R('a', AQ[0] + 4 * t, 4), [f'v{T+t}']), 0)
        put(b + 16 + t // 2, valu(f'v_add_u32 v{T+8+t}, s{sW8192}, v{KB+t}', [f'v{T+8+t}'], [f'v{KB+t}']), 6)
        put(b + 24 + t, I(f'ds_read_b128 {rr("a",AQ[1]+4*t,4)}, v{T+8+t} offset:16384', 'ds', R('a', AQ[1] + 4 * t, 4), [f'v{T+8+t}']), 0)
    for x in lfin(0, sBit0, False): put(b + 28, x, 7)
    for x in lfin(1, sBit1, True): put(NG + 11, x, 7)
    for db in range(4):
        ins = oepi(0, db, sOprev, True); g0 = NG + 1 + 6 * db - (1 if db else 0); n = 6 if db else 5
        for i, x in enumerate(ins): put(g0 + i * n // len(ins), x, 8)
        ins = oepi(1, db, sOprev1, True); g0 = NG + 24 + 4 * db
        for i, x in enumerate(ins): put(g0 + i * 4 // len(ins), x, 8)
    out = []
    for g in range(NG):
        out.append(slots[g])
        for _, _, x in sorted(gaps[g], key=lambda e: (e[0], e[1])): out.append(x)
        if g == 47:
            pass
    return out

def add_waits(seq, passes):
    out = []; ds = []; vm = []
    for ins in seq:
        if ins.k == 'waitvm':
            n = None
            for i in range(len(vm) - 1, -1, -1):
                if vm[i] is not None and vm[i][0] == 'slot' and vm[i][1] % 20 == ins.tag % 20:
                    n = len(vm) - 1 - i; break
            if n is None: n = 0
            w = I(f's_waitcnt vmcnt({min(n,63)})', 'wait', tag=('vm', ins, n), prev=ins.prev); out.append(w); continue
        touched = ins.u | ins.d
        need = None
        for i, (pos, dst) in enumerate(ds):
            if dst & touched: need = i
        if need is not None:
            n = len(ds) - 1 - need
            recent = sum(1 for (pos, dst) in ds if pos > len(out) - CFG['lgk_window'])
            n = min(n, recent, 15)
            out.append(I(f's_waitcnt lgkmcnt({n})', 'wait', tag=('lgkm', ins, n), prev=ins.prev))
            ds = ds[len(ds) - n:] if n else []
        out.append(ins)
        if ins.k == 'ds': ds.append((len(out), ins.d))
        if ins.k in ('vm', 'st'): vm.append(ins.tag)
        if ins.k == 'bar': pass
    return out

def states(x):
    if x.k == 'nop': return int(x.t.split()[1]) + 1
    return 1
def fix_hazards(seq, name):
    out = []; added = 0
    for ins in seq:
        if ins.k in ('label',): out.append(ins); continue
        req = 0; dist = 0
        for p in reversed(out):
            if dist >= 13: break
            if p.k == 'label': continue
            need = 0
            if p.k == 'mfma':
                if ins.k == 'mfma':
                    ab = ins.u
                    if p.d & ab: need = 12
                    elif (p.d & ins.c) and p.d != ins.c: need = 10
                    elif (p.d & ins.d) and not (p.d == ins.d and ins.c): need = 12
                elif ins.k in ('valu', 'trans', 'perm', 'st', 'ds', 'vm'):
                    if p.d & (ins.u | ins.d): need = 12
                    elif ins.k in ('valu', 'trans', 'perm') and (p.c & ins.d): need = 7
            elif p.k in ('valu', 'trans', 'perm'):
                if ins.k == 'mfma' and (p.d & (ins.u | ins.c)): need = 2
                if ins.k == 'perm' and (p.d & ins.u): need = max(need, 2)
                if p.k == 'trans' and ins.k in ('valu', 'perm', 'mfma', 'st') and (p.d & ins.u): need = max(need, 1)
                if p.k == 'perm' and (p.d & ins.u): need = max(need, 1)
            elif p.k == 'st':
                if ins.k in ('valu', 'trans', 'perm') and (p.u & ins.d): need = 2
            elif p.k == 'salu' and 'm0' in p.t.split(',')[0] and ins.k == 'vm': need = 1
            req = max(req, need - dist)
            dist += states(p)
        if req > 0:
            out.append(I(f's_nop {req-1}', 'nop', prev=ins.prev)); added += 1
        out.append(ins)
    if added: print(f'; hazard nops added in {name}: {added}', file=sys.stderr)
    return out

def prologue_text():
    A = []; e = A.append
    e('s_cmp_ge_u32 s2, 256'); e('s_cbranch_scc1 L_end')
    e('s_load_dwordx4 s[4:7], s[0:1], 0'); e('s_load_dwordx4 s[48:51], s[0:1], 16')
    e('v_lshrrev_b32 v1, 6, v0'); e('v_and_b32 v0, 63, v0'); e('s_nop 0'); e(f'v_readfirstlane_b32 s{sWv}, v1')
    e('v_and_b32 v2, 31, v0'); e('v_lshrrev_b32 v3, 5, v0')
    e('v_and_b32 v4, 15, v2')
    for t in range(8):
        e(f'v_add_u32 v5, {2*t}, v3'); e('v_xor_b32 v5, v5, v4'); e('v_lshlrev_b32 v5, 4, v5')
        e(f'v_lshl_add_u32 v{KA+t}, v2, 8, v5'); e(f'v_add_u32 v{KB+t}, 0x10000, v{KA+t}')
    e('v_bfe_u32 v4, v0, 2, 2')
    e('v_lshl_add_u32 v5, v3, 2, v4')
    e('v_lshlrev_b32 v5, 8, v5')
    e('v_bfe_u32 v6, v0, 4, 1'); e('v_lshl_add_u32 v5, v6, 5, v5')
    e('v_and_b32 v6, 3, v0'); e('v_lshl_add_u32 v5, v6, 3, v5')
    for db in range(4):
        e(f'v_xor_b32 v6, {db}, v4'); e('v_lshl_add_u32 v6, v6, 6, v5')
        e(f'v_add_u32 v{VB+db}, 0x10000, v6'); e(f'v_add_u32 v{VC+db}, 0x20000, v6')
    e(f's_lshl_b32 s{sW2048}, s{sWv}, 11'); e(f's_lshl_b32 s{sW8192}, s{sWv}, 13')
    e('v_lshrrev_b32 v4, 4, v0'); e(f's_lshl_b32 s{sT}, s{sWv}, 3'); e(f'v_add_u32 v5, s{sT}, v4')
    e('v_and_b32 v6, 15, v0')
    e('v_and_b32 v7, 15, v5'); e('v_xor_b32 v7, v7, v6'); e('v_lshlrev_b32 v7, 4, v7'); e(f'v_lshl_add_u32 v{DK0}, v5, 8, v7')
    e('v_add_u32 v7, 4, v5'); e('v_and_b32 v7, 15, v7'); e('v_xor_b32 v7, v7, v6'); e('v_lshlrev_b32 v7, 4, v7'); e(f'v_lshl_add_u32 v{DK1}, v5, 8, v7')
    e('v_lshlrev_b32 v7, 2, v4'); e('v_xor_b32 v7, v7, v6'); e('v_lshlrev_b32 v7, 4, v7'); e(f'v_lshl_add_u32 v{DV}, v5, 8, v7')
    e(f's_lshl_b32 s{sT}, s{sWv}, 14'); e('v_lshlrev_b32 v7, 8, v2'); e('v_lshl_add_u32 v7, v3, 4, v7'); e(f'v_add_u32 v{VST}, s{sT}, v7')
    if CFG['pairmode'] == 1:
        e('s_lshr_b32 s3, s2, 4'); e('s_lshl_b32 s3, s3, 3'); e(f's_and_b32 s{sT}, s2, 7'); e(f's_add_u32 s3, s3, s{sT}')
        e(f's_lshr_b32 s{sHalf}, s2, 3'); e(f's_and_b32 s{sHalf}, s{sHalf}, 1')
    else:
        e('s_lshr_b32 s3, s2, 1'); e(f's_and_b32 s{sHalf}, s2, 1')
    e(f's_lshl_b32 s{sHalf}, s{sHalf}, 16')
    e(f's_lshl_b32 s{sHead0}, s3, 17')
    e(f's_mov_b32 s{sHead}, s{sHead0}'); e(f's_add_u32 s{sHeadN}, s{sHead0}, 0x1000000')
    e(f's_add_u32 s{sQN}, s{sHead0}, s{sHalf}')
    e(f's_mov_b32 s{sOprev}, {OOB:#x}'); e(f's_mov_b32 s{sOprev1}, {OOB:#x}')
    e(f's_mov_b32 s{sB}, 0'); e(f's_mov_b32 s{sBad}, 0'); e(f's_mov_b32 s{sBit0}, 1'); e(f's_mov_b32 s{sBit1}, 0')
    e(f's_mov_b32 s{sC}, {fbits(cval):#x}'); e(f's_mov_b32 s{sNegC}, {fbits(-cval):#x}')
    thr = -1.0 if CFG['force_slow'] else 2.0 ** CFG['thr_log2']
    e(f's_mov_b32 s{sThr}, {fbits(thr):#x}')
    e('s_waitcnt lgkmcnt(0)')
    for srd, lo in ((sQ, 4), (sK, 6), (sV, 48), (sO, 50)):
        e(f's_mov_b32 s{srd}, s{lo}'); e(f's_and_b32 s{srd+1}, s{lo+1}, 0xffff'); e(f's_mov_b32 s{srd+2}, 0x4000000'); e(f's_mov_b32 s{srd+3}, 0x20000')
    return [I(t, 'text') for t in A]

def prologue_seq():
    seq = []
    for s in range(9):
        for g in dma_slot(s): seq += g
    seq.append(salu(f's_add_u32 s{sQN}, s{sHeadN}, s{sHalf}'))
    seq.append(I('WAITVM', 'waitvm', tag=4)); seq.append(I('s_barrier', 'bar'))
    for t in range(8):
        seq.append(valu(f'v_add_u32 v{T+t}, s{sW8192}, v{KA+t}', [f'v{T+t}'], [f'v{KA+t}']))
        seq.append(valu(f'v_add_u32 v{T+8+t}, s{sW8192}, v{KB+t}', [f'v{T+8+t}'], [f'v{KB+t}']))
    for t in range(8):
        seq.append(I(f'ds_read_b128 {rr("a",AQ[0]+4*t,4)}, v{T+t}', 'ds', R('a', AQ[0] + 4 * t, 4), [f'v{T+t}']))
        seq.append(kread(t, 4))
    for t in range(8):
        seq.append(I(f'ds_read_b128 {rr("a",AQ[1]+4*t,4)}, v{T+8+t} offset:16384', 'ds', R('a', AQ[1] + 4 * t, 4), [f'v{T+8+t}']))
    return seq

def stamp(i):
    return [f's_memtime s[{60+2*i}:{61+2*i}]', 's_waitcnt lgkmcnt(0)'] if CFG['stamps'] else []
def blockend():
    return [salu(f's_add_u32 s{sOprev}, s{sHead}, s{sHalf}'), salu(f's_add_u32 s{sOprev1}, s{sOprev}, 8192'),
            salu(f's_mov_b32 s{sHead}, s{sHeadN}'),
            salu(f's_add_u32 s{sB}, s{sB}, 1'),
            salu(f's_add_u32 s{sHeadN}, s{sHeadN}, 0x1000000'),
            salu(f's_cmp_ge_u32 s{sB}, 3'), salu(f's_cselect_b32 s{sHeadN}, {OOB:#x}, s{sHeadN}'),
            salu(f's_add_u32 s{sQN}, s{sHeadN}, s{sHalf}'),
            salu(f's_lshl_b32 s{sT2}, s{sB}, 1'),
            salu(f's_lshl_b32 s{sBit0}, 1, s{sT2}'), salu(f's_lshr_b32 s{sBit1}, s{sBit0}, 1'),
            salu(f's_cmp_lt_u32 s{sB}, 4')]

def slow_text():
    A = []; e = A.append
    e('s_waitcnt vmcnt(0) lgkmcnt(0)'); e('s_barrier')
    e(f's_cmp_eq_u32 s{sBad}, 0'); e('s_cbranch_scc1 L_end')
    G = T; M = MT[0]; N = NMC[0]; Ls = L[0]; s = S[0]; VT = T + 4
    e(f'v_subrev_u32 v{T+8}, s{sW2048}, v{DV}')
    for db in range(4): e(f'v_add_u32 v{VT+db}, s{sW8192}, v{VB+db}')
    e(f's_lshl_b32 s{sT2}, s{sWv}, 14')
    e(f'v_subrev_u32 v{G}, s{sT2}, v{VST}')
    e(f's_mov_b32 s{sIdx}, 0')
    e('L_slow_loop:')
    e(f's_lshr_b32 s{sT}, s{sBad}, s{sIdx}'); e(f's_and_b32 s{sT}, s{sT}, 1'); e(f's_cmp_eq_u32 s{sT}, 0'); e('s_cbranch_scc1 L_slow_next')
    e(f's_lshr_b32 s{sT}, s{sIdx}, 1'); e(f's_lshl_b32 s{sT}, s{sT}, 24'); e(f's_add_u32 s{sHead}, s{sHead0}, s{sT}')
    e(f's_and_b32 s{sT}, s{sIdx}, 1'); e(f's_lshl_b32 s{sT}, s{sT}, 13'); e(f's_add_u32 s{sOcur}, s{sHead}, s{sHalf}'); e(f's_add_u32 s{sOcur}, s{sOcur}, s{sT}')
    e(f's_lshl_b32 s{sT}, s{sWv}, 14'); e(f's_add_u32 s{sT}, s{sT}, s{sOcur}')
    for t in range(8): e(f'buffer_load_dwordx4 {rr("a",AQ[0]+4*t,4)}, v{G}, s[{sQ}:{sQ+3}], s{sT} offen offset:{32*t}')
    e(f'v_mov_b32 v{M}, 0xff800000')
    def ktile():
        e(f's_lshl_b32 s{sT}, s{sTile}, 13'); e(f's_add_u32 s{sT}, s{sT}, s{sHead}')
        for t in range(8): e(f'buffer_load_dwordx4 {rr("a",AK+4*t,4)}, v{G}, s[{sK}:{sK+3}], s{sT} offen offset:{32*t}')
    def qk():
        e('s_waitcnt vmcnt(0)')
        for t in range(8): e(mfma(s, ('a', AK + 4 * t), ('a', AQ[0] + 4 * t), c0=(t == 0)).t)
        e('s_nop 15')
    e(f's_mov_b32 s{sTile}, 0'); e('L_slow_p1:')
    ktile(); qk()
    for r in range(0, 16, 2): e(f'v_max3_f32 v{M}, v{M}, v{s+r}, v{s+r+1}')
    e(f's_add_u32 s{sTile}, s{sTile}, 1'); e(f's_cmp_lt_u32 s{sTile}, 16'); e('s_cbranch_scc1 L_slow_p1')
    e(f'v_mov_b32 v{N}, v{M}'); e('s_nop 1'); e(f'v_permlane32_swap_b32 v{M}, v{N}'); e('s_nop 1'); e(f'v_max_f32 v{M}, v{M}, v{N}')
    e(f'v_mul_f32 v{N}, s{sNegC}, v{M}'); e(f'v_mov_b32 v{Ls}, 0')
    for r in range(64): e(f'v_mov_b32 v{O[0]+r}, 0')
    e(f's_mov_b32 s{sTile}, 0'); e('L_slow_p2:')
    ktile()
    e(f's_add_u32 m0, s{sW8192}, 81920'); e('s_nop 0')
    for p in range(4): e(f'buffer_load_dwordx4 v{T+8}, s[{sV}:{sV+3}], s{sT} offen offset:{1024*p} lds')
    e(f's_add_u32 m0, s{sW8192}, {81920+4096}'); e(f's_add_u32 s{sT}, s{sT}, 4096')
    for p in range(4): e(f'buffer_load_dwordx4 v{T+8}, s[{sV}:{sV+3}], s{sT} offen offset:{1024*p} lds')
    qk()
    for r in range(16): e(f'v_fma_f32 v{s+r}, v{s+r}, s{sC}, v{N}')
    for r in range(16): e(f'v_exp_f32 v{s+r}, v{s+r}')
    e('s_nop 0')
    for r in range(16): e(f'v_add_f32 v{Ls}, v{Ls}, v{s+r}')
    for k in range(8): e(f'v_cvt_pk_bf16_f32 v{P[0]+k}, v{s+2*k}, v{s+2*k+1}')
    for f in range(8):
        for sec in range(2):
            e(f'ds_read_b64_tr_b16 {rr("a",AV+4*f+2*sec,2)}, v{VT+(f&3)} offset:{16384+(f>>2)*4096+sec*2048}')
    e('s_waitcnt lgkmcnt(0)')
    for f in range(8): e(mfma(O[0] + 16 * (f & 3), ('a', AV + 4 * f), ('v', P[0] + 4 * (f >> 2))).t)
    e(f's_add_u32 s{sTile}, s{sTile}, 1'); e(f's_cmp_lt_u32 s{sTile}, 16'); e('s_cbranch_scc1 L_slow_p2')
    e('s_nop 15')
    e(f'v_mov_b32 v{M}, v{Ls}'); e('s_nop 1'); e(f'v_permlane32_swap_b32 v{Ls}, v{M}'); e('s_nop 1'); e(f'v_add_f32 v{Ls}, v{Ls}, v{M}')
    e(f'v_rcp_f32 v{INV[0]}, v{Ls}'); e('s_nop 1')
    sv = CFG.get('_x')
    seq = []
    global T_save
    for db in range(4): seq += oepi_slow(db)
    for x in fix_hazards(seq, 'slow-epi'): e(x.t)
    e('s_waitcnt vmcnt(0)')
    e('L_slow_next:')
    e(f's_add_u32 s{sIdx}, s{sIdx}, 1'); e(f's_cmp_lt_u32 s{sIdx}, 8'); e('s_cbranch_scc1 L_slow_loop')
    return [I(t, 'text') for t in A]
def oepi_slow(db):
    global T
    sv = T; T = S[1]
    r = oepi(0, db, sOcur, False); T = sv
    return r

def main():
    blk = build_block()
    pro = prologue_seq()
    be = blockend()
    full = add_waits(pro + blk + be + blk + be, 1)
    idx = [i for i, x in enumerate(full) if x is be[-1]]
    first = next(i for i, x in enumerate(full) if x is blk[0] or (x.k == 'wait' and x.tag[1] is blk[0]))
    pro_w = full[:first]; b1 = full[first:idx[0] + 1]; b2 = full[idx[0] + 1:idx[1] + 1]
    def wmap(b):
        m = {}
        for x in b:
            if x.k == 'wait': m[(x.tag[0], id(x.tag[1]))] = x.tag[2]
        return m
    m1, m2 = wmap(b1), wmap(b2)
    body = []
    for x in blk + be:
        if x.k == 'waitvm':
            n = min(m1[('vm', id(x))], m2[('vm', id(x))]); body.append(I(f's_waitcnt vmcnt({min(n,63)})', 'wait', prev=x.prev)); continue
        c = [m[('lgkm', id(x))] for m in (m1, m2) if ('lgkm', id(x)) in m]
        if c: body.append(I(f's_waitcnt lgkmcnt({min(c)})', 'wait', prev=x.prev))
        body.append(x)
    mark = I('L_loop:', 'label')
    two = fix_hazards(pro_w + [mark] + body, 'first')
    k = two.index(mark); pro_f = two[:k]
    mark2 = I('', 'label')
    two2 = fix_hazards(body + [mark2] + body, 'steady')
    body_f = two2[two2.index(mark2) + 1:]
    body_1 = two[k + 1:]
    assert len(body_f) >= len(body_1) - 2, (len(body_f), len(body_1))
    tail = [x for x in blk if x.prev and x.k not in ('waitvm',)]
    tail_w = add_waits([x for x in blk[-80:]if x.k in ('ds',)] + tail, 1)
    tail_w = [x for x in tail_w if x.k not in ('ds',)]
    mark3 = I('', 'label')
    t2 = fix_hazards(body[-60:] + [mark3] + [I('s_waitcnt lgkmcnt(0)', 'wait')] + tail_w, 'tail')
    tail_f = t2[t2.index(mark3) + 1:]
    out = []
    hdr = open('standalone__gqa_softmax__near_ridge.s.ref').read().split('\n')
    name = 'standalone__gqa_softmax__near_ridge_kernel'
    for ln in hdr:
        if ln.startswith('; @launch'): out.append('; @launch grid=(256,1,1) block=(256,1,1) lds=163840')
        elif ln.startswith(';'): out.append(ln)
        else: break
    out += ['.amdgcn_target "amdgcn-amd-amdhsa--gfx950"', '.text', f'.globl {name}', '.p2align 8', f'.type {name},@function', f'{name}:']
    out += stamp(0) + (['s_memrealtime s[80:81]'] if CFG['stamps'] else [])
    out += [x.t for x in prologue_text()]
    out += [x.t for x in pro_f]
    out.append('s_nop 0' if CFG.get('pad') else '.p2align 3' if False else '')
    out += stamp(1)
    out.append('L_loop:')
    out += [x.t for x in body_f]
    if CFG['stamps']:
        out += ['s_cselect_b32 s3, 1, 0', 's_memtime s[84:85]', 's_waitcnt lgkmcnt(0)']
        for b in range(4): out += [f's_cmp_eq_u32 s{sB}, {b+1}', f's_cselect_b32 s{64+2*b}, s84, s{64+2*b}']
        out += ['s_cmp_eq_u32 s3, 1']
    out.append('s_cbranch_scc1 L_loop')
    out += [x.t for x in tail_f]
    if CFG['stamps']:
        out += ['s_waitcnt vmcnt(0)'] + stamp(6) + ['s_memrealtime s[82:83]', 's_load_dwordx2 s[86:87], s[0:1], 32', 's_waitcnt lgkmcnt(0)',
                f's_cmp_lg_u32 s2, {CFG["stampwg"]}', 's_cbranch_scc1 L_nost', f's_cmp_lg_u32 s{sWv}, 0', 's_cbranch_scc1 L_nost',
                's_mov_b32 s88, s86', 's_and_b32 s89, s87, 0xffff', 's_mov_b32 s90, 256', 's_mov_b32 s91, 0x20000', 'v_mov_b32 v1, 0']
        for i, r in enumerate([62, 64, 66, 68, 70, 72]):
            out += [f's_sub_u32 s3, s{r}, s60', 'v_mov_b32 v2, s3', f'buffer_store_dword v2, v1, s[88:91], 0 offen offset:{4*i}']
        out += ['s_sub_u32 s3, s82, s80', 'v_mov_b32 v2, s3', 'buffer_store_dword v2, v1, s[88:91], 0 offen offset:24', 's_waitcnt vmcnt(0)', 'L_nost:']
    out += [x.t for x in slow_text()]
    out += ['L_end:', 's_endpgm', '.section .rodata,"a"', '.p2align 6', f'.amdhsa_kernel {name}',
            '  .amdhsa_next_free_vgpr 384', '  .amdhsa_next_free_sgpr 102', '  .amdhsa_accum_offset 256',
            '  .amdhsa_group_segment_fixed_size 0', '  .amdhsa_kernarg_size 48', '  .amdhsa_user_sgpr_count 2',
            '  .amdhsa_user_sgpr_kernarg_segment_ptr 1', '  .amdhsa_system_sgpr_workgroup_id_x 1', '.end_amdhsa_kernel']
    open(sys.argv[1], 'w').write('\n'.join(o for o in out if o != '') + '\n')
    n = lambda k: sum(1 for x in body_f if x.k == k)
    print('body instrs', len(body_f), {k: n(k) for k in ('mfma', 'valu', 'trans', 'perm', 'ds', 'vm', 'st', 'salu', 'wait', 'nop', 'bar')}, file=sys.stderr)
main()
```

```python
import sys, struct, math
CFG = dict(stp=0, stv=0, stoff=27, dsp=4, ssp=4, o1s=24, peel=1, rr=1, m16=0, wgst=0, qi1=2, qr1=8, qi0=9, xor=0, ldf=0, stf=0, nomfma=0, nost=0, itst=-1, nodma=0, novalu=0, nolds=0, rot=0, stamps=0, stampwg=0, force_slow=0, thr_log2=30, lgk_window=18, pairmode=1)
for a in sys.argv[2:]:
    k, v = a.split('='); CFG[k] = int(v)

LDF = ['', ' nt', ' sc1', ' sc0 sc1', ' sc0', ' sc0 sc1 nt', ' sc1 nt']
class I:
    __slots__ = ('t', 'k', 'd', 'u', 'tag', 'prev', 'c')
    def __init__(s, t, k, d=(), u=(), tag=None, prev=False, c=()):
        s.t = t; s.k = k; s.d = set(d); s.u = set(u); s.tag = tag; s.prev = prev; s.c = set(c)
def R(p, a, n=1): return [f'{p}{a+i}' for i in range(n)]
def rr(p, a, n): return f'{p}[{a}:{a+n-1}]' if n > 1 else f'{p}{a}'

O = [0, 64]; S = [128, 144]; P = [160, 168]
KA = 176; VB = 192; XR = 196
WA = [184,185,186,187,188,189,190,191,228,229,230,231,252,253,254,255]
T1 = 236
DK0 = 200; DK1 = 201; DV = 202; VST = 203; QD = 232
L = [204, 205]; INV = [206, 207]; NMC = [208, 209]; MT = [210, 211]
T = 212
AQ = [0, 32]; AK = 64; AV = 96; AN = 128; ARB = 160
sQ, sK, sV, sO = 8, 12, 16, 20
sW2048 = 24; sW8192 = 25; sHead = 26; sHeadN = 27; sQN = 28; sOprev = 29; sT = 30; sB = 31
sC = 32; sNegC = 33; sBad = 34; sBit0 = 35; sBit1 = 36; sT2 = 37; sHalf = 38; sOprev1 = 39; sThr = 40
sHead0 = 41; sIdx = 42; sTile = 43; sT3 = 44; sOcur = 45; sWv = 46; sRot = 47; sXW = 52; sQW = 53; sO4 = 54; sX2 = 55; sO14 = 56
OOB = 0x40000000
cval = math.log2(math.e) / math.sqrt(128.0)
def fbits(x): return struct.unpack('<I', struct.pack('<f', x))[0]

def mfma(dst, a, b, c0=False, prev=False):
    ctext = '0' if c0 else rr('v', dst, 16)
    if CFG['m16']:
        c1 = '0' if c0 else rr('v', dst, 4); c2 = '0' if c0 else rr('v', dst + 8, 4)
        return I(f'v_mfma_f32_16x16x32_bf16 {rr("v",dst,4)}, {rr(a[0],a[1],4)}, {rr(b[0],b[1],4)}, {c1}\nv_mfma_f32_16x16x32_bf16 {rr("v",dst+8,4)}, {rr(a[0],a[1],4)}, {rr(b[0],b[1],4)}, {c2}', 'mfma',
             R('v', dst, 16), R(a[0], a[1], 4) + R(b[0], b[1], 4), prev=prev, c=([] if c0 else R('v', dst, 16)))
    return I(f'v_mfma_f32_32x32x16_bf16 {rr("v",dst,16)}, {rr(a[0],a[1],4)}, {rr(b[0],b[1],4)}, {ctext}', 'mfma',
             R('v', dst, 16), R(a[0], a[1], 4) + R(b[0], b[1], 4), prev=prev, c=([] if c0 else R('v', dst, 16)))
def valu(t, d, u, prev=False, k='valu'): return I(t, k, d, u, prev=prev)
def salu(t, prev=False): return I(t, 'salu', prev=prev)

def kaddr(pos): return (KA, pos * 8192)
def vaddr(pos): return (VB, pos * 8192)
def kread(t, pos):
    b, o = kaddr(pos)
    return I(f'ds_read_b128 {rr("a",AK+4*t,4)}, v{b+t} offset:{o}', 'ds', R('a', AK + 4 * t, 4), [f'v{b+t}'])
def vread(f, sec, pos):
    u, db = f >> 2, f & 3
    b, o = vaddr(pos)
    return I(f'ds_read_b64_tr_b16 {rr("a",AV+4*f+2*sec,2)}, v{b+db} offset:{o+u*4096+sec*2048}', 'ds',
             R('a', AV + 4 * f + 2 * sec, 2), [f'v{b+db}'])
def ld(v, srd, off, tag): return I(f'buffer_load_dwordx4 v{v}, s[{srd}:{srd+3}], s{sT} offen offset:{off}{LDF[CFG["ldf"]]} lds', 'vm', [], [f'v{v}'], tag=tag)
def dma_tile(tile):
    nb = tile >= 16; tt = tile % 16; pos = tt % 8
    kb = pos * 8192; vb = 65536 + pos * 8192
    src = sHeadN if nb else sHead
    tag = ('kv', tt)
    if CFG['xor']: pre = [salu(f's_xor_b32 s{sT}, s{sRot}, {tt*8192}'), salu(f's_add_u32 m0, s{sW2048}, {kb}'), salu(f's_add_u32 s{sT}, s{sT}, s{src}')]
    else: pre = [salu(f's_add_u32 m0, s{sW2048}, {kb}'), salu(f's_add_u32 s{sT}, s{src}, {tt*8192}')]
    return [pre + [ld(DK0, sK, 0, tag)], [ld(DK1, sK, 1024, tag)],
            [salu(f's_add_u32 m0, s{sW2048}, {vb}'), I('s_nop 0', 'nop'), ld(DV, sV, 0, tag)], [ld(DV, sV, 1024, tag)]]
def dma_q(qb, ldsbase):
    tag = ('q', qb); g = []
    for p in range(8):
        pre = []
        if p % 4 == 0:
            pre = [salu(f's_add_u32 m0, s{ldsbase}, {(p>>2)*4096}'), salu(f's_add_u32 s{sT}, s{sQW}, {qb*8192+(p>>2)*4096}')]
        g.append(pre + [ld(QD + (p & 3), sQ, (p & 3) * 1024, tag)])
    return g

def lfin(q, bit, prev):
    l, inv, t = L[q], INV[q], MT[q]
    return [valu(f'v_mov_b32 v{t}, v{l}', [f'v{t}'], [f'v{l}'], prev),
            valu(f'v_permlane32_swap_b32 v{l}, v{t}', [f'v{l}', f'v{t}'], [f'v{l}', f'v{t}'], prev, 'perm'),
            valu(f'v_add_f32 v{l}, v{l}, v{t}', [f'v{l}'], [f'v{l}', f'v{t}'], prev),
            valu(f'v_rcp_f32 v{inv}, v{l}', [f'v{inv}'], [f'v{l}'], prev, 'trans'),
            valu(f'v_cmp_nge_f32 vcc, s{sThr}, v{l}', ['vcc'], [f'v{l}'], prev),
            I(f's_cmp_lg_u64 vcc, 0', 'salu', [], ['vcc'], prev=prev), salu(f's_cselect_b32 s{sT2}, s{bit}, 0', prev),
            salu(f's_or_b32 s{sBad}, s{sBad}, s{sT2}', prev)]
def oepi(q, db, tb0, prev):
    o = O[q] + 16 * db; inv = INV[q]; r = []
    for hf in range(2):
        tb = tb0 + 8 * hf
        for i in range(8):
            r.append(valu(f'v_mul_f32 v{tb+i}, v{o+8*hf+i}, v{inv}', [f'v{tb+i}'], [f'v{o+8*hf+i}', f'v{inv}'], prev))
    for hf in range(2):
        tb = tb0 + 8 * hf
        for i in range(4):
            r.append(valu(f'v_cvt_pk_bf16_f32 v{tb+i}, v{tb+2*i}, v{tb+2*i+1}', [f'v{tb+i}'], [f'v{tb+2*i}', f'v{tb+2*i+1}'], prev))
    for hf in range(2):
        tb = tb0 + 8 * hf
        for e_ in range(2):
            c = 4 * db + 2 * hf + e_
            r.append(I(f'ds_write_b64 v{WA[c]}, {rr("v",tb+2*e_,2)}', 'dsw', [], R('v', tb + 2 * e_, 2) + [f'v{WA[c]}'], prev=prev))
    return r
def oflush(soff, soff4, prev, ab):
    rd = []; st = []
    for p in range(8):
        tb = ab + 4 * p
        rd.append(I(f'ds_read_b128 {rr("a",tb,4)}, v{XR+(p&3)} offset:{p*1024}', 'ds', R('a', tb, 4), [f'v{XR+(p&3)}'], prev=prev))
        if CFG['stv'] == 1:
            st.append(I(f'buffer_store_dwordx4 {rr("v",T1,4)}, v{VST}, s[{sO}:{sO+3}], s{soff4 if p >= 4 else soff} offen offset:{(p&3)*1024}{LDF[CFG["stf"]]}', 'st', [], R('a', tb, 4) + [f'v{VST}'], prev=prev, tag=('st',)))
        elif CFG['stv'] == 2:
            st.append(I(f'buffer_store_dword v{T1}, v{VST}, s[{sO}:{sO+3}], s{soff4 if p >= 4 else soff} offen offset:{(p&3)*1024}{LDF[CFG["stf"]]}', 'st', [], R('a', tb, 4) + [f'v{VST}'], prev=prev, tag=('st',)))
        elif CFG['stv'] == 3:
            st.append(I(f'buffer_store_dwordx2 {rr("a",tb,2)}, v{VST}, s[{sO}:{sO+3}], s{soff4 if p >= 4 else soff} offen offset:{(p&3)*1024}{LDF[CFG["stf"]]}', 'st', [], R('a', tb, 4) + [f'v{VST}'], prev=prev, tag=('st',)))
        else:
            st.append(I(f'buffer_store_dwordx4 {rr("a",tb,4)}, v{VST}, s[{sO}:{sO+3}], s{soff4 if p >= 4 else soff} offen offset:{(p&3)*1024}{LDF[CFG["stf"]]}', 'st', [], R('a', tb, 4) + [f'v{VST}'], prev=prev, tag=('st',)))
    return rd, st
def maxpro(q):
    s = S[q]; a, b = MT[q], NMC[q]
    m3 = lambda d, x, y, z: valu(f'v_max3_f32 v{d}, v{x}, v{y}, v{z}', [f'v{d}'], [f'v{x}', f'v{y}', f'v{z}'])
    r = [m3(a, s, s+1, s+2), m3(b, s+3, s+4, s+5), m3(a, a, s+6, s+7), m3(b, b, s+8, s+9), m3(a, a, s+10, s+11), m3(b, b, s+12, s+13),
         m3(a, a, s+14, s+15), valu(f'v_max_f32 v{a}, v{a}, v{b}', [f'v{a}'], [f'v{a}', f'v{b}']),
         valu(f'v_mov_b32 v{b}, v{a}', [f'v{b}'], [f'v{a}']),
         valu(f'v_permlane32_swap_b32 v{a}, v{b}', [f'v{a}', f'v{b}'], [f'v{a}', f'v{b}'], k='perm'),
         valu(f'v_max_f32 v{a}, v{a}, v{b}', [f'v{a}'], [f'v{a}', f'v{b}']),
         valu(f'v_mul_f32 v{b}, s{sNegC}, v{a}', [f'v{b}'], [f'v{a}'])]
    return r

def build_block():
    NG = 512
    gaps = [[] for _ in range(NG)]
    slots = [None] * NG
    def put(g, ins, prio):
        prev = g >= NG
        if prev:
            ins.prev = True; g -= NG
        gaps[g].append((prio, len(gaps[g]), ins))
    for j in range(16):
        b = 32 * j
        for t in range(8):
            slots[b + t] = mfma(S[0], ('a', AK + 4 * t), ('a', AQ[0] + 4 * t), c0=(t == 0))
            slots[b + 16 + t] = mfma(S[1], ('a', AK + 4 * t), ('a', AQ[1] + 4 * t), c0=(t == 0))
        for f in range(8):
            u, db = f >> 2, f & 3
            slots[b + 24 + f] = mfma(O[0] + 16 * db, ('a', AV + 4 * f), ('v', P[0] + 4 * u), c0=(j == 0 and u == 0))
            g = b + 40 + f
            m = mfma(O[1] + 16 * db, ('a', AV + 4 * f), ('v', P[1] + 4 * u), c0=(j == 0 and u == 0), prev=(g >= NG))
            slots[g % NG] = m
        for q in range(2):
            g0 = b + 9 + 16 * q; s = S[q]
            if j == 0:
                for x in maxpro(q): put(g0, x, 1)
            for r in range(16):
                put(g0 + r, valu(f'v_fma_f32 v{s+r}, v{s+r}, s{sC}, v{NMC[q]}', [f'v{s+r}'], [f'v{s+r}', f'v{NMC[q]}']), 2)
                put(g0 + r + 1, valu(f'v_exp_f32 v{s+r}, v{s+r}', [f'v{s+r}'], [f'v{s+r}'], k='trans'), 3)
                if j == 0 and r == 0:
                    put(g0 + r + 2, valu(f'v_mov_b32 v{L[q]}, v{s}', [f'v{L[q]}'], [f'v{s}']), 4)
                else:
                    put(g0 + r + 2, valu(f'v_add_f32 v{L[q]}, v{L[q]}, v{s+r}', [f'v{L[q]}'], [f'v{L[q]}', f'v{s+r}']), 4)
            for k in range(8):
                put(g0 + 3 + 2 * k, valu(f'v_cvt_pk_bf16_f32 v{P[q]+k}, v{s+2*k}, v{s+2*k+1}', [f'v{P[q]+k}'], [f'v{s+2*k}', f'v{s+2*k+1}']), 5)
        for k in range(16): put(b + 9 + k, vread(k >> 1, k & 1, j % 8), 0)
        for t in range(8): put(b + 24 + t, kread(t, (j + 1) % 8), 0)
        need = ('kv', (j + 1) % 16)
        if CFG['itst'] >= 0:
            put(b, I(f's_cmp_lg_u32 s{sB}, {CFG["itst"]}\ns_cbranch_scc1 L_is{j}\ns_memtime s[{60+2*j}:{61+2*j}]\nL_is{j}:', 'text'), -3)
        put(b, I('WAITVM', 'waitvm', tag=need), -2); put(b, I('s_barrier', 'bar'), -1)
        grp = dma_tile(j + 7)
        for i, g in enumerate(grp):
            for x in g: put(b + 1 + CFG['dsp'] * i, x, 0)
    QI1, QR1, QI0 = CFG['qi1'], CFG['qr1'], CFG['qi0']
    for i, g in enumerate(dma_q(1, sXW)):
        for x in g: put(32 * QI1 + 17 + 4 * (i % 4) + 32 * (i // 4), x, 0)
    put(32 * QR1 + 1, I('WAITVM', 'waitvm', tag=('q', 1)), -2)
    for t in range(8):
        put(32 * QR1 - 8 + t, valu(f'v_add_u32 v{T+t}, s{sXW}, v{KA+t}', [f'v{T+t}'], [f'v{KA+t}']), 6)
        put(32 * QR1 + 1 + t, I(f'ds_read_b128 {rr("a",AN+4*t,4)}, v{T+t}', 'ds', R('a', AN + 4 * t, 4), [f'v{T+t}']), 0)
    put(32 * QI0 + 1, I('s_waitcnt lgkmcnt(0)', 'waitl0'), -2)
    for i, g in enumerate(dma_q(0, sXW)):
        for x in g: put(32 * QI0 + 17 + 4 * (i % 4) + 32 * (i // 4), x, 0)
    b = 32 * 15
    put(b + 8, I('WAITVM', 'waitvm', tag=('q', 0)), -2)
    for t in range(8):
        put(b + t, valu(f'v_add_u32 v{T+t}, s{sXW}, v{KA+t}', [f'v{T+t}'], [f'v{KA+t}']), 6)
        put(b + 8 + t, I(f'ds_read_b128 {rr("a",AQ[0]+4*t,4)}, v{T+t}', 'ds', R('a', AQ[0] + 4 * t, 4), [f'v{T+t}']), 0)
    for r in range(32):
        put(b + 25 + (r // 4) + (r // 4) // 2, valu(f'v_accvgpr_mov_b32 a{AQ[1]+r}, a{AN+r}', [f'a{AQ[1]+r}'], [f'a{AN+r}']), 6)
    b = 32 * 15
    for i, x in enumerate(lfin(0, sBit0, False)): put(b + 27 + (0, 0, 1, 2, 2, 3, 3, 3)[i], x, 7)
    for i, x in enumerate(lfin(1, sBit1, True)): put(NG + 11 + (0, 0, 1, 2, 2, 3, 3, 3)[i], x, 7)
    for db in range(4):
        ins = oepi(0, db, T, True); g0 = NG + 1 + 6 * db - (1 if db else 0); n = 6 if db else 5
        if db == 3: n = 5
        for i, x in enumerate(ins): put(g0 + i * n // len(ins), x, 8)
        ins = oepi(1, db, T1, True); g0 = NG + CFG['o1s'] + 4 * db
        for i, x in enumerate(ins): put(g0 + i * 4 // len(ins), x, 8.5)
    for q, g0 in ((0, NG + 23), (1, NG + 41)):
        rd, st = oflush(sOprev1 if q else sOprev, sO14 if q else sO4, True, ARB + 32 * q)
        for p in range(8): put(g0 + (p // 4 if q == 0 else p // 2), rd[p], 7.5)
        for p in range(8): put(max(NG + CFG['stoff'] + CFG['ssp'] * (8 * q + p), g0 + 4 + p), st[p], {0: 9, 1: -0.5, 2: 99}[CFG['stp']])
    out = []; marks = []
    for g in range(NG):
        if g % 32 == 0: marks.append(len(out))
        out.append(slots[g])
        items = sorted(gaps[g], key=lambda e: (e[0], e[1]))
        head = [x for p, _, x in items if p <= 0]
        streams = {}
        last = [x for p, _, x in items if p >= 99]
        for p, _, x in items:
            if 0 < p < 99:
                key = 'sm' if p <= 5 else p
                streams.setdefault(key, []).append(x)
        out += head
        sl = [streams[k] for k in streams]
        if not CFG['rr']:
            for l_ in sl: out += l_
            out += last
            continue
        while any(sl):
            best = None
            for l_ in sl:
                if not l_: continue
                x = l_[0]; st = 0
                for dist, p in enumerate(reversed(out[-4:])):
                    if p.k in ('valu', 'trans', 'perm') and (p.d & (x.u | x.d if x.k == 'perm' else x.u)):
                        lat = 3 if (x.k == 'perm' or p.k in ('trans', 'perm') or 'vcc' in p.d) else 2
                        st = max(st, lat - dist)
                    if p.k == 'salu' and x.k == 'salu' and p.t.startswith('s_cmp'): pass
                if out[-1].k == 'salu' and out[-1].t.startswith('s_cmp_lg_u64') and x.t.startswith('s_cselect'): st = -100
                key = (st, -len(l_))
                if best is None or key < best[0]: best = (key, l_)
            out.append(best[1].pop(0))
        out += last
    return out, marks

def add_waits(seq, passes):
    out = []; ds = []; vm = []
    for ins in seq:
        if ins.k == 'waitvm':
            n = None
            for i in range(len(vm) - 1, -1, -1):
                if vm[i] is not None and vm[i] == ins.tag:
                    n = len(vm) - 1 - i; break
            if n is None: n = 0
            w = I(f's_waitcnt vmcnt({min(n,63)})', 'wait', tag=('vm', ins, n), prev=ins.prev); out.append(w); continue
        if ins.k == 'waitl0':
            out.append(ins); ds = []; continue
        touched = ins.u | ins.d
        need = None
        for i, (pos, dst) in enumerate(ds):
            if dst & touched: need = i
        if need is not None:
            n = len(ds) - 1 - need
            recent = sum(1 for (pos, dst) in ds if pos > len(out) - CFG['lgk_window'])
            n = min(n, recent, 15)
            out.append(I(f's_waitcnt lgkmcnt({n})', 'wait', tag=('lgkm', ins, n), prev=ins.prev))
            ds = ds[len(ds) - n:] if n else []
        out.append(ins)
        if ins.k in ('ds', 'dsw'): ds.append((len(out), ins.d))
        if ins.k in ('vm', 'st'): vm.append(ins.tag)
        if ins.k == 'bar': pass
    return out

def states(x):
    if x.k == 'nop': return int(x.t.split()[1]) + 1
    return 1
def fix_hazards(seq, name):
    out = []; added = 0
    for ins in seq:
        if ins.k in ('label',): out.append(ins); continue
        req = 0; dist = 0
        for p in reversed(out):
            if dist >= 13: break
            if p.k == 'label': continue
            need = 0
            if p.k == 'mfma':
                if ins.k == 'mfma':
                    ab = ins.u
                    if p.d & ab: need = 12
                    elif (p.d & ins.c) and p.d != ins.c: need = 10
                    elif (p.d & ins.d) and not (p.d == ins.d and ins.c): need = 12
                elif ins.k in ('valu', 'trans', 'perm', 'st', 'ds', 'dsw', 'vm'):
                    if p.d & (ins.u | ins.d): need = 12
                    elif ins.k in ('valu', 'trans', 'perm') and (p.c & ins.d): need = 7
            elif p.k in ('valu', 'trans', 'perm'):
                if ins.k == 'mfma' and (p.d & (ins.u | ins.c)): need = 2
                if ins.k == 'perm' and (p.d & ins.u): need = max(need, 2)
                if p.k == 'trans' and ins.k in ('valu', 'perm', 'mfma', 'st', 'dsw') and (p.d & ins.u): need = max(need, 1)
                if p.k == 'perm' and (p.d & ins.u): need = max(need, 1)
                if ins.k == 'salu' and 'vcc' in p.d and 'vcc' in ins.u: need = max(need, 4)
            elif p.k in ('st', 'dsw'):
                if ins.k in ('valu', 'trans', 'perm') and (p.u & ins.d): need = 2
            elif p.k == 'salu' and 'm0' in p.t.split(',')[0] and ins.k == 'vm': need = 1
            req = max(req, need - dist)
            dist += states(p)
        if req > 0:
            out.append(I(f's_nop {req-1}', 'nop', prev=ins.prev)); added += 1
        out.append(ins)
    if added: print(f'; hazard nops added in {name}: {added}', file=sys.stderr)
    return out

def prologue_text():
    A = []; e = A.append
    e('s_cmp_ge_u32 s2, 256'); e('s_cbranch_scc1 L_end')
    e('s_load_dwordx4 s[4:7], s[0:1], 0'); e('s_load_dwordx4 s[48:51], s[0:1], 16')
    e('v_lshrrev_b32 v1, 6, v0'); e('v_and_b32 v0, 63, v0'); e('s_nop 0'); e(f'v_readfirstlane_b32 s{sWv}, v1')
    e('v_and_b32 v2, 31, v0'); e('v_lshrrev_b32 v3, 5, v0')
    e('v_and_b32 v4, 15, v2')
    e(f's_lshl_b32 s{sW2048}, s{sWv}, 11'); e(f's_lshl_b32 s{sW8192}, s{sWv}, 13'); e(f's_add_u32 s{sXW}, s{sW8192}, 131072')
    e(f's_and_b32 s{sX2}, s{sWv}, 1'); e(f's_add_u32 s{sX2}, s{sX2}, 6'); e(f's_lshl_b32 s{sX2}, s{sX2}, 13')
    e(f's_lshr_b32 s{sT}, s{sWv}, 1'); e(f's_lshl_b32 s{sT}, s{sT}, 16'); e(f's_add_u32 s{sX2}, s{sX2}, s{sT}')
    for t in range(8):
        e(f'v_add_u32 v5, {2*t}, v3'); e('v_xor_b32 v5, v5, v4'); e('v_lshlrev_b32 v5, 4, v5')
        e(f'v_lshl_add_u32 v{KA+t}, v2, 8, v5')
    e('v_lshlrev_b32 v6, 8, v2'); e('v_lshl_add_u32 v6, v3, 3, v6'); e(f'v_add_u32 v6, s{sXW}, v6')
    for c in range(16):
        e(f'v_xor_b32 v5, {c}, v4'); e(f'v_lshl_add_u32 v{WA[c]}, v5, 4, v6')
    e('v_bfe_u32 v4, v0, 2, 2')
    e('v_lshl_add_u32 v5, v3, 2, v4')
    e('v_lshlrev_b32 v5, 8, v5')
    e('v_bfe_u32 v6, v0, 4, 1'); e('v_lshl_add_u32 v5, v6, 5, v5')
    e('v_and_b32 v6, 3, v0'); e('v_lshl_add_u32 v5, v6, 3, v5')
    for db in range(4):
        e(f'v_xor_b32 v6, {db}, v4'); e('v_lshl_add_u32 v6, v6, 6, v5')
        e(f'v_add_u32 v{VB+db}, 0x10000, v6')
    e('v_lshrrev_b32 v4, 4, v0'); e(f's_lshl_b32 s{sT}, s{sWv}, 3'); e(f'v_add_u32 v5, s{sT}, v4')
    e('v_and_b32 v6, 15, v0')
    e('v_and_b32 v7, 15, v5'); e('v_xor_b32 v7, v7, v6'); e('v_lshlrev_b32 v7, 4, v7'); e(f'v_lshl_add_u32 v{DK0}, v5, 8, v7')
    e('v_add_u32 v7, 4, v5'); e('v_and_b32 v7, 15, v7'); e('v_xor_b32 v7, v7, v6'); e('v_lshlrev_b32 v7, 4, v7'); e(f'v_lshl_add_u32 v{DK1}, v5, 8, v7')
    e('v_lshlrev_b32 v7, 2, v4'); e('v_xor_b32 v7, v7, v6'); e('v_lshlrev_b32 v7, 4, v7'); e(f'v_lshl_add_u32 v{DV}, v5, 8, v7')
    e(f's_lshl_b32 s{sT3}, s{sWv}, 14'); e('v_lshlrev_b32 v7, 4, v0'); e(f'v_add_u32 v{VST}, s{sT3}, v7')
    for pp in range(4):
        e(f'v_add_u32 v7, {4*pp}, v4'); e('v_xor_b32 v7, v7, v6'); e('v_lshlrev_b32 v7, 4, v7')
        e(f'v_lshl_add_u32 v{QD+pp}, v4, 8, v7'); e(f'v_add_u32 v{XR+pp}, s{sXW}, v{QD+pp}')
    if CFG['pairmode'] == 1:
        e('s_lshr_b32 s3, s2, 4'); e('s_lshl_b32 s3, s3, 3'); e(f's_and_b32 s{sT}, s2, 7'); e(f's_add_u32 s3, s3, s{sT}')
        e(f's_lshr_b32 s{sHalf}, s2, 3'); e(f's_and_b32 s{sHalf}, s{sHalf}, 1')
    else:
        e('s_lshr_b32 s3, s2, 1'); e(f's_and_b32 s{sHalf}, s2, 1')
    if CFG['xor']: e(f's_mul_i32 s{sRot}, s{sHalf}, {CFG["xor"]*8192}')
    e(f's_lshl_b32 s{sHalf}, s{sHalf}, 16')
    e(f's_lshl_b32 s{sHead0}, s3, 17')
    if CFG['rot']:
        e(f's_lshr_b32 s{sRot}, s3, {CFG["rot"]-1}'); e(f's_and_b32 s{sRot}, s{sRot}, 15'); e(f's_lshl_b32 s{sRot}, s{sRot}, 13')
    e(f's_mov_b32 s{sHead}, s{sHead0}'); e(f's_add_u32 s{sHeadN}, s{sHead0}, 0x1000000')
    e(f's_add_u32 s{sQW}, s{sHead0}, s{sHalf}'); e(f's_add_u32 s{sQW}, s{sQW}, s{sT3}')
    e(f's_mov_b32 s{sO4}, {OOB:#x}'); e(f's_mov_b32 s{sO14}, {OOB:#x}')
    e(f's_mov_b32 s{sOprev}, {OOB:#x}'); e(f's_mov_b32 s{sOprev1}, {OOB:#x}')
    e(f's_mov_b32 s{sB}, 0'); e(f's_mov_b32 s{sBad}, 0'); e(f's_mov_b32 s{sBit0}, 1'); e(f's_mov_b32 s{sBit1}, 0')
    e(f's_mov_b32 s{sC}, {fbits(cval):#x}'); e(f's_mov_b32 s{sNegC}, {fbits(-cval):#x}')
    thr = -1.0 if CFG['force_slow'] else 2.0 ** CFG['thr_log2']
    e(f's_mov_b32 s{sThr}, {fbits(thr):#x}')
    e('s_waitcnt lgkmcnt(0)')
    for srd, lo in ((sQ, 4), (sK, 6), (sV, 48), (sO, 50)):
        e(f's_mov_b32 s{srd}, s{lo}'); e(f's_and_b32 s{srd+1}, s{lo+1}, 0xffff'); e(f's_mov_b32 s{srd+2}, 0x4000000'); e(f's_mov_b32 s{srd+3}, 0x20000')
    return [I(t, 'text') for t in A]

def prologue_seq(blk0):
    seq = []
    t0 = dma_tile(0)
    for x in [y for g in dma_q(0, sXW) for y in g] + t0[0] + t0[1]: seq.append(x)
    t0[1][-1].tag = ('k0',)
    for g in dma_q(1, sX2): seq += g
    seq += [salu(f's_add_u32 s{sT}, s{sHead}, 0')] if not CFG['xor'] else [salu(f's_add_u32 s{sT}, s{sHead}, s{sRot}')]
    seq += t0[2] + t0[3]
    for tl in range(1, 6):
        for g in dma_tile(tl): seq += g
    seq.append(salu(f's_add_u32 s{sQW}, s{sHeadN}, s{sHalf}')); seq.append(salu(f's_add_u32 s{sQW}, s{sQW}, s{sT3}'))
    for t in range(8):
        seq.append(valu(f'v_add_u32 v{T+t}, s{sXW}, v{KA+t}', [f'v{T+t}'], [f'v{KA+t}']))
        seq.append(valu(f'v_add_u32 v{T+8+t}, s{sX2}, v{KA+t}', [f'v{T+8+t}'], [f'v{KA+t}']))
    seq.append(I('WAITVM', 'waitvm', tag=('k0',))); seq.append(I('s_barrier', 'bar'))
    for t in range(8):
        seq.append(I(f'ds_read_b128 {rr("a",AQ[0]+4*t,4)}, v{T+t}', 'ds', R('a', AQ[0] + 4 * t, 4), [f'v{T+t}']))
        seq.append(kread(t, 0))
    g = -1
    for x in blk0:
        if x.k == 'mfma':
            g += 1
            if g == 24:
                seq.append(I('WAITVM', 'waitvm', tag=('kv', 1))); seq.append(I('s_waitcnt lgkmcnt(0)', 'waitl0')); seq.append(I('s_barrier', 'bar'))
                for gg in dma_tile(6) + dma_tile(7): seq += gg
        if x.prev or x.k in ('waitvm', 'bar', 'vm', 'text') or (x.k in ('salu', 'nop') and not x.prev): continue
        seq.append(x)
        if x.k == 'mfma' and g == 7:
            seq.append(I('WAITVM', 'waitvm', tag=('kv', 0))); seq.append(I('s_barrier', 'bar'))
            for t in range(8):
                seq.append(I(f'ds_read_b128 {rr("a",AQ[1]+4*t,4)}, v{T+8+t}', 'ds', R('a', AQ[1] + 4 * t, 4), [f'v{T+8+t}']))
    return seq

def stamp(i):
    return [f's_memtime s[{60+2*i}:{61+2*i}]', 's_waitcnt lgkmcnt(0)'] if CFG['stamps'] else []
def blockend():
    return [salu(f's_add_u32 s{sOprev}, s{sHead}, s{sHalf}'), salu(f's_add_u32 s{sOprev1}, s{sOprev}, 8192'),
            salu(f's_mov_b32 s{sHead}, s{sHeadN}'),
            salu(f's_add_u32 s{sB}, s{sB}, 1'),
            salu(f's_add_u32 s{sHeadN}, s{sHeadN}, 0x1000000'),
            salu(f's_cmp_ge_u32 s{sB}, 3'), salu(f's_cselect_b32 s{sHeadN}, {OOB:#x}, s{sHeadN}'),
            salu(f's_add_u32 s{sQW}, s{sHeadN}, s{sHalf}'), salu(f's_add_u32 s{sQW}, s{sQW}, s{sT3}'),
            salu(f's_add_u32 s{sO4}, s{sOprev}, 4096'), salu(f's_add_u32 s{sO14}, s{sOprev1}, 4096'),
            salu(f's_lshl_b32 s{sT2}, s{sB}, 1'),
            salu(f's_lshl_b32 s{sBit0}, 1, s{sT2}'), salu(f's_lshr_b32 s{sBit1}, s{sBit0}, 1'),
            salu(f's_cmp_lt_u32 s{sB}, 4')]

def slow_text():
    A = []; e = A.append
    e('s_waitcnt vmcnt(0) lgkmcnt(0)'); e('s_barrier')
    e(f's_cmp_eq_u32 s{sBad}, 0'); e('s_cbranch_scc1 L_end')
    G = T; M = MT[0]; N = NMC[0]; Ls = L[0]; s = S[0]; VT = T + 4
    e(f'v_subrev_u32 v{T+8}, s{sW2048}, v{DV}')
    for db in range(4): e(f'v_add_u32 v{VT+db}, s{sW8192}, v{VB+db}')
    e(f'v_mbcnt_lo_u32_b32 v{G}, -1, 0'); e(f'v_mbcnt_hi_u32_b32 v{G}, -1, v{G}')
    e(f'v_lshrrev_b32 v{G+1}, 5, v{G}'); e(f'v_and_b32 v{G}, 31, v{G}'); e(f'v_lshlrev_b32 v{G}, 8, v{G}'); e(f'v_lshl_add_u32 v{G}, v{G+1}, 4, v{G}')
    e(f's_mov_b32 s{sIdx}, 0')
    e('L_slow_loop:')
    e(f's_lshr_b32 s{sT}, s{sBad}, s{sIdx}'); e(f's_and_b32 s{sT}, s{sT}, 1'); e(f's_cmp_eq_u32 s{sT}, 0'); e('s_cbranch_scc1 L_slow_next')
    e(f's_lshr_b32 s{sT}, s{sIdx}, 1'); e(f's_lshl_b32 s{sT}, s{sT}, 24'); e(f's_add_u32 s{sHead}, s{sHead0}, s{sT}')
    e(f's_and_b32 s{sT}, s{sIdx}, 1'); e(f's_lshl_b32 s{sT}, s{sT}, 13'); e(f's_add_u32 s{sOcur}, s{sHead}, s{sHalf}'); e(f's_add_u32 s{sOcur}, s{sOcur}, s{sT}')
    e(f's_lshl_b32 s{sT}, s{sWv}, 14'); e(f's_add_u32 s{sT}, s{sT}, s{sOcur}')
    for t in range(8): e(f'buffer_load_dwordx4 {rr("a",AQ[0]+4*t,4)}, v{G}, s[{sQ}:{sQ+3}], s{sT} offen offset:{32*t}')
    e(f'v_mov_b32 v{M}, 0xff800000')
    def ktile():
        e(f's_lshl_b32 s{sT}, s{sTile}, 13'); e(f's_add_u32 s{sT}, s{sT}, s{sHead}')
        for t in range(8): e(f'buffer_load_dwordx4 {rr("a",AK+4*t,4)}, v{G}, s[{sK}:{sK+3}], s{sT} offen offset:{32*t}')
    def qk():
        e('s_waitcnt vmcnt(0)')
        for t in range(8): e(mfma(s, ('a', AK + 4 * t), ('a', AQ[0] + 4 * t), c0=(t == 0)).t)
        e('s_nop 15')
    e(f's_mov_b32 s{sTile}, 0'); e('L_slow_p1:')
    ktile(); qk()
    for r in range(0, 16, 2): e(f'v_max3_f32 v{M}, v{M}, v{s+r}, v{s+r+1}')
    e(f's_add_u32 s{sTile}, s{sTile}, 1'); e(f's_cmp_lt_u32 s{sTile}, 16'); e('s_cbranch_scc1 L_slow_p1')
    e(f'v_mov_b32 v{N}, v{M}'); e('s_nop 1'); e(f'v_permlane32_swap_b32 v{M}, v{N}'); e('s_nop 1'); e(f'v_max_f32 v{M}, v{M}, v{N}')
    e(f'v_mul_f32 v{N}, s{sNegC}, v{M}'); e(f'v_mov_b32 v{Ls}, 0')
    for r in range(64): e(f'v_mov_b32 v{O[0]+r}, 0')
    e(f's_mov_b32 s{sTile}, 0'); e('L_slow_p2:')
    ktile()
    e(f's_add_u32 m0, s{sW8192}, 65536'); e('s_nop 0')
    for p in range(4): e(f'buffer_load_dwordx4 v{T+8}, s[{sV}:{sV+3}], s{sT} offen offset:{1024*p} lds')
    e(f's_add_u32 m0, s{sW8192}, {65536+4096}'); e(f's_add_u32 s{sT}, s{sT}, 4096')
    for p in range(4): e(f'buffer_load_dwordx4 v{T+8}, s[{sV}:{sV+3}], s{sT} offen offset:{1024*p} lds')
    qk()
    for r in range(16): e(f'v_fma_f32 v{s+r}, v{s+r}, s{sC}, v{N}')
    for r in range(16): e(f'v_exp_f32 v{s+r}, v{s+r}')
    e('s_nop 0')
    for r in range(16): e(f'v_add_f32 v{Ls}, v{Ls}, v{s+r}')
    for k in range(8): e(f'v_cvt_pk_bf16_f32 v{P[0]+k}, v{s+2*k}, v{s+2*k+1}')
    for f in range(8):
        for sec in range(2):
            e(f'ds_read_b64_tr_b16 {rr("a",AV+4*f+2*sec,2)}, v{VT+(f&3)} offset:{(f>>2)*4096+sec*2048}')
    e('s_waitcnt lgkmcnt(0)')
    for f in range(8): e(mfma(O[0] + 16 * (f & 3), ('a', AV + 4 * f), ('v', P[0] + 4 * (f >> 2))).t)
    e(f's_add_u32 s{sTile}, s{sTile}, 1'); e(f's_cmp_lt_u32 s{sTile}, 16'); e('s_cbranch_scc1 L_slow_p2')
    e('s_nop 15')
    e(f'v_mov_b32 v{M}, v{Ls}'); e('s_nop 1'); e(f'v_permlane32_swap_b32 v{Ls}, v{M}'); e('s_nop 1'); e(f'v_add_f32 v{Ls}, v{Ls}, v{M}')
    e(f'v_rcp_f32 v{INV[0]}, v{Ls}'); e('s_nop 1')
    sv = CFG.get('_x')
    seq = []
    global T_save
    for db in range(4): seq += oepi_slow(db)
    e(f's_add_u32 s{sO4}, s{sOcur}, 4096')
    rd, st = oflush(sOcur, sO4, False, ARB)
    seq += rd + [I('s_waitcnt lgkmcnt(0)', 'wait')] + st
    for x in fix_hazards(seq, 'slow-epi'): e(x.t)
    e('s_waitcnt vmcnt(0)')
    e('L_slow_next:')
    e(f's_add_u32 s{sIdx}, s{sIdx}, 1'); e(f's_cmp_lt_u32 s{sIdx}, 8'); e('s_cbranch_scc1 L_slow_loop')
    return [I(t, 'text') for t in A]
def oepi_slow(db): return oepi(0, db, S[1], False)

def main():
    blk, marks = build_block()
    def filt(l):
        if CFG['nodma']: l = [x for x in l if x.k not in ('vm', 'st')]
        if CFG['novalu'] == 1: l = [x for x in l if x.k not in ('valu', 'trans', 'perm')]
        if CFG['nomfma']: l = [x for x in l if x.k != 'mfma']
        if CFG['nost']: l = [x for x in l if x.k != 'st']
        if CFG['nolds']: l = [x for x in l if x.k not in ('ds', 'dsw')]
        return l
    it0 = blk[:marks[1]]; rest = filt(blk[marks[1]:]);
    blk2, _ = build_block()
    pro = prologue_seq(blk2[:marks[1]])
    it0 = filt(it0)
    blk = it0 + rest
    be = blockend()
    entry = I('L_it1:', 'label')
    full = add_waits(pro + rest + be + it0 + rest + be + it0 + rest + be, 1)
    wm = {}
    for x in full:
        if x.k == 'wait' and x.tag:
            key = (x.tag[0], id(x.tag[1])); wm[key] = min(wm.get(key, 99), x.tag[2])
    def apply(l):
        o = []
        for x in l:
            if x.k == 'waitvm':
                o.append(I(f's_waitcnt vmcnt({min(wm[("vm", id(x))], 63)})', 'wait', prev=x.prev)); continue
            if ('lgkm', id(x)) in wm: o.append(I(f's_waitcnt lgkmcnt({wm[("lgkm", id(x))]})', 'wait', prev=x.prev))
            o.append(x)
        return o
    pro_w = apply(pro); it0_w = apply(it0); rest_w = apply(rest + be)
    body = it0_w + rest_w
    mk = I('', 'label')
    a1 = fix_hazards(pro_w + [mk] + rest_w[:40], 'pro'); pro_f = a1[:a1.index(mk)]; r_a = a1[a1.index(mk) + 1:]
    mk2 = I('', 'label'); mk3 = I('', 'label')
    a2 = fix_hazards(rest_w[-60:] + [mk2] + it0_w + [mk3] + rest_w, 'steady')
    it0_f = a2[a2.index(mk2) + 1:a2.index(mk3)]; rest_f = a2[a2.index(mk3) + 1:]
    chk = fix_hazards(pro_f[-40:] + rest_f[:60], 'entrycheck'); assert len(chk) == 100, len(chk)
    body_f = it0_f + [entry] + rest_f
    tail = [x for x in blk if x.prev and x.k not in ('waitvm',)]
    tail_w = add_waits(tail, 1)
    mark3 = I('', 'label')
    t2 = fix_hazards(body[-60:] + [mark3] + [I('s_waitcnt lgkmcnt(0)', 'wait')] + tail_w, 'tail')
    tail_f = t2[t2.index(mark3) + 1:]
    out = []
    hdr = open('standalone__gqa_softmax__near_ridge.s.ref').read().split('\n')
    name = 'standalone__gqa_softmax__near_ridge_kernel'
    for ln in hdr:
        if ln.startswith('; @launch'): out.append('; @launch grid=(256,1,1) block=(256,1,1) lds=163840')
        elif ln.startswith(';'): out.append(ln)
        else: break
    out += ['.amdgcn_target "amdgcn-amd-amdhsa--gfx950"', '.text', f'.globl {name}', '.p2align 8', f'.type {name},@function', f'{name}:']
    out += stamp(0) + (['s_memrealtime s[80:81]'] if CFG['stamps'] else [])
    out += [x.t for x in prologue_text()]
    out += [x.t for x in pro_f]
    out.append('s_nop 0' if CFG.get('pad') else '.p2align 3' if False else '')
    out += stamp(1)
    out.append('s_branch L_it1')
    out.append('L_loop:')
    out += [x.t for x in body_f]
    if CFG['stamps']:
        out += ['s_cselect_b32 s3, 1, 0', 's_memtime s[84:85]', 's_waitcnt lgkmcnt(0)']
        for b in range(4): out += [f's_cmp_eq_u32 s{sB}, {b+1}', f's_cselect_b32 s{64+2*b}, s84, s{64+2*b}']
        out += ['s_cmp_eq_u32 s3, 1']
    out.append('s_cbranch_scc1 L_loop')
    out += [x.t for x in tail_f]
    if CFG['stamps']:
        out += ['s_waitcnt vmcnt(0)'] + stamp(6) + ['s_memrealtime s[82:83]', 's_load_dwordx2 s[86:87], s[0:1], 32', 's_waitcnt lgkmcnt(0)',
                f's_cmp_lg_u32 s2, {CFG["stampwg"]}', 's_cbranch_scc1 L_nost', f's_cmp_lg_u32 s{sWv}, 0', 's_cbranch_scc1 L_nost',
                's_mov_b32 s88, s86', 's_and_b32 s89, s87, 0xffff', 's_mov_b32 s90, 256', 's_mov_b32 s91, 0x20000', 'v_mov_b32 v1, 0']
        for i, r in enumerate([62, 64, 66, 68, 70, 72]):
            out += [f's_sub_u32 s3, s{r}, s60', 'v_mov_b32 v2, s3', f'buffer_store_dword v2, v1, s[88:91], 0 offen offset:{4*i}']
        out += ['s_sub_u32 s3, s82, s80', 'v_mov_b32 v2, s3', 'buffer_store_dword v2, v1, s[88:91], 0 offen offset:24', 's_waitcnt vmcnt(0)', 'L_nost:']
    if CFG['itst'] >= 0 and CFG['wgst']:
        out += ['s_waitcnt vmcnt(0) lgkmcnt(0)', 's_memtime s[92:93]', 's_waitcnt lgkmcnt(0)']
    elif CFG['itst'] >= 0:
        out += ['s_waitcnt vmcnt(0) lgkmcnt(0)', 's_memtime s[92:93]', 's_load_dwordx2 s[96:97], s[0:1], 32', 's_waitcnt lgkmcnt(0)',
                f's_cmp_lg_u32 s2, {CFG["stampwg"]}', 's_cbranch_scc1 L_nost', f's_cmp_lg_u32 s{sWv}, 0', 's_cbranch_scc1 L_nost',
                's_and_b32 s97, s97, 0xffff', 's_mov_b32 s98, 256', 's_mov_b32 s99, 0x20000', 'v_mov_b32 v1, 0']
        for i in range(16):
            nxt = 62 + 2 * i
            out += [f's_sub_u32 s3, s{nxt}, s{60+2*i}', 'v_mov_b32 v2, s3', f'buffer_store_dword v2, v1, s[96:99], 0 offen offset:{4*i}']
        out += ['s_waitcnt vmcnt(0)', 'L_nost:']
    if CFG['wgst'] and CFG['itst'] >= 0:
        out += ['s_load_dwordx2 s[96:97], s[0:1], 40', 's_waitcnt lgkmcnt(0)', f's_cmp_lg_u32 s{sWv}, 0', 's_cbranch_scc1 L_nost3',
                's_and_b32 s97, s97, 0xffff', 's_mov_b32 s98, 0x10000', 's_mov_b32 s99, 0x20000', 's_lshl_b32 s3, s2, 6', 's_add_u32 s3, s3, 16384', 'v_mov_b32 v1, s3']
        for i in range(16):
            out += [f's_sub_u32 s3, s{62+2*i}, s{60+2*i}', 'v_mov_b32 v2, s3', f'buffer_store_dword v2, v1, s[96:99], 0 offen offset:{4*i}']
        out += ['s_waitcnt vmcnt(0)', 'L_nost3:']
    elif CFG['wgst']:
        out += ['s_load_dwordx2 s[88:89], s[0:1], 40', 's_waitcnt lgkmcnt(0)', f's_cmp_lg_u32 s{sWv}, 0', 's_cbranch_scc1 L_nost2',
                's_and_b32 s89, s89, 0xffff', 's_mov_b32 s90, 0x10000', 's_mov_b32 s91, 0x20000', 's_lshl_b32 s3, s2, 6', 'v_mov_b32 v1, s3']
        vals = ['s80', 's82', ('s72', 's60'), ('s62', 's60'), ('s64', 's60'), ('s66', 's60'), ('s68', 's60'), ('s70', 's60'), ('s72', 's60')]
        for i, r in enumerate(vals):
            out += ([f's_sub_u32 s3, {r[0]}, {r[1]}', 'v_mov_b32 v2, s3'] if isinstance(r, tuple) else [f'v_mov_b32 v2, {r}']) + [f'buffer_store_dword v2, v1, s[88:91], 0 offen offset:{4*i}']
        out += ['s_waitcnt vmcnt(0)', 'L_nost2:']
    out += [x.t for x in slow_text()]
    out += ['L_end:', 's_endpgm', '.section .rodata,"a"', '.p2align 6', f'.amdhsa_kernel {name}',
            '  .amdhsa_next_free_vgpr 512', '  .amdhsa_next_free_sgpr 102', '  .amdhsa_accum_offset 256',
            '  .amdhsa_group_segment_fixed_size 0', '  .amdhsa_kernarg_size 48', '  .amdhsa_user_sgpr_count 2',
            '  .amdhsa_user_sgpr_kernarg_segment_ptr 1', '  .amdhsa_system_sgpr_workgroup_id_x 1', '.end_amdhsa_kernel']
    open(sys.argv[1], 'w').write('\n'.join(o for o in out if o != '') + '\n')
    n = lambda k: sum(1 for x in body_f if x.k == k)
    print('body instrs', len(body_f), {k: n(k) for k in ('mfma', 'valu', 'trans', 'perm', 'ds', 'vm', 'st', 'salu', 'wait', 'nop', 'bar')}, file=sys.stderr)
main()
```

```python
import sys, struct, math
CFG = dict(pkm=0, early=0, tord=0, stp=0, stv=0, stoff=27, dsp=4, ssp=4, o1s=24, peel=1, rr=1, m16=0, wgst=0, qi1=2, qr1=8, qi0=9, xor=0, ldf=0, stf=0, nomfma=0, nost=0, itst=-1, nodma=0, novalu=0, nolds=0, rot=0, stamps=0, stampwg=0, force_slow=0, thr_log2=30, lgk_window=18, pairmode=1)
for a in sys.argv[2:]:
    k, v = a.split('='); CFG[k] = int(v)

LDF = ['', ' nt', ' sc1', ' sc0 sc1', ' sc0', ' sc0 sc1 nt', ' sc1 nt']
class I:
    __slots__ = ('t', 'k', 'd', 'u', 'tag', 'prev', 'c')
    def __init__(s, t, k, d=(), u=(), tag=None, prev=False, c=()):
        s.t = t; s.k = k; s.d = set(d); s.u = set(u); s.tag = tag; s.prev = prev; s.c = set(c)
def R(p, a, n=1): return [f'{p}{a+i}' for i in range(n)]
def rr(p, a, n): return f'{p}[{a}:{a+n-1}]' if n > 1 else f'{p}{a}'

O = [0, 64]; S = [128, 144]; P = [160, 168]
KA = 176; VB = 192; XR = 196
WA = [184,185,186,187,188,189,190,191,228,229,230,231,252,253,254,255]
T1 = 236
DK0 = 200; DK1 = 201; DV = 202; VST = 203; QD = 232
L = [204, 205]; INV = [206, 207]; NMC = [208, 209]; MT = [210, 211]
T = 212
AQ = [0, 32]; AK = 64; AV = 96; AN = 128; ARB = 160
sQ, sK, sV, sO = 8, 12, 16, 20
sW2048 = 24; sW8192 = 25; sHead = 26; sHeadN = 27; sQN = 28; sOprev = 29; sT = 30; sB = 31
sC = 32; sNegC = 33; sBad = 34; sBit0 = 35; sBit1 = 36; sT2 = 37; sHalf = 38; sOprev1 = 39; sThr = 40
sHead0 = 41; sIdx = 42; sTile = 43; sT3 = 44; sOcur = 45; sWv = 46; sRot = 47; sXW = 52; sQW = 53; sO4 = 54; sX2 = 55; sO14 = 56
OOB = 0x40000000
cval = math.log2(math.e) / math.sqrt(128.0)
def fbits(x): return struct.unpack('<I', struct.pack('<f', x))[0]

def mfma(dst, a, b, c0=False, prev=False):
    ctext = '0' if c0 else rr('v', dst, 16)
    if CFG['m16']:
        c1 = '0' if c0 else rr('v', dst, 4); c2 = '0' if c0 else rr('v', dst + 8, 4)
        return I(f'v_mfma_f32_16x16x32_bf16 {rr("v",dst,4)}, {rr(a[0],a[1],4)}, {rr(b[0],b[1],4)}, {c1}\nv_mfma_f32_16x16x32_bf16 {rr("v",dst+8,4)}, {rr(a[0],a[1],4)}, {rr(b[0],b[1],4)}, {c2}', 'mfma',
             R('v', dst, 16), R(a[0], a[1], 4) + R(b[0], b[1], 4), prev=prev, c=([] if c0 else R('v', dst, 16)))
    return I(f'v_mfma_f32_32x32x16_bf16 {rr("v",dst,16)}, {rr(a[0],a[1],4)}, {rr(b[0],b[1],4)}, {ctext}', 'mfma',
             R('v', dst, 16), R(a[0], a[1], 4) + R(b[0], b[1], 4), prev=prev, c=([] if c0 else R('v', dst, 16)))
def valu(t, d, u, prev=False, k='valu'): return I(t, k, d, u, prev=prev)
def salu(t, prev=False): return I(t, 'salu', prev=prev)

def kaddr(pos): return (KA, pos * 8192)
def vaddr(pos): return (VB, pos * 8192)
def kread(t, pos):
    b, o = kaddr(pos)
    return I(f'ds_read_b128 {rr("a",AK+4*t,4)}, v{b+t} offset:{o}', 'ds', R('a', AK + 4 * t, 4), [f'v{b+t}'])
def vread(f, sec, pos):
    u, db = f >> 2, f & 3
    b, o = vaddr(pos)
    return I(f'ds_read_b64_tr_b16 {rr("a",AV+4*f+2*sec,2)}, v{b+db} offset:{o+u*4096+sec*2048}', 'ds',
             R('a', AV + 4 * f + 2 * sec, 2), [f'v{b+db}'])
def ld(v, srd, off, tag): return I(f'buffer_load_dwordx4 v{v}, s[{srd}:{srd+3}], s{sT} offen offset:{off}{LDF[CFG["ldf"]]} lds', 'vm', [], [f'v{v}'], tag=tag)
def dma_tile(tile):
    nb = tile >= 16; tt = tile % 16; pos = tt % 8
    kb = pos * 8192; vb = 65536 + pos * 8192
    src = sHeadN if nb else sHead
    tag = ('kv', tt)
    if CFG['xor']: pre = [salu(f's_xor_b32 s{sT}, s{sRot}, {tt*8192}'), salu(f's_add_u32 m0, s{sW2048}, {kb}'), salu(f's_add_u32 s{sT}, s{sT}, s{src}')]
    else: pre = [salu(f's_add_u32 m0, s{sW2048}, {kb}'), salu(f's_add_u32 s{sT}, s{src}, {tt*8192}')]
    return [pre + [ld(DK0, sK, 0, tag)], [ld(DK1, sK, 1024, tag)],
            [salu(f's_add_u32 m0, s{sW2048}, {vb}'), I('s_nop 0', 'nop'), ld(DV, sV, 0, tag)], [ld(DV, sV, 1024, tag)]]
def dma_q(qb, ldsbase):
    tag = ('q', qb); g = []
    for p in range(8):
        pre = []
        if p % 4 == 0:
            pre = [salu(f's_add_u32 m0, s{ldsbase}, {(p>>2)*4096}'), salu(f's_add_u32 s{sT}, s{sQW}, {qb*8192+(p>>2)*4096}')]
        g.append(pre + [ld(QD + (p & 3), sQ, (p & 3) * 1024, tag)])
    return g

def lfin(q, bit, prev):
    l, inv, t = L[q], INV[q], MT[q]
    return [valu(f'v_mov_b32 v{t}, v{l}', [f'v{t}'], [f'v{l}'], prev),
            valu(f'v_permlane32_swap_b32 v{l}, v{t}', [f'v{l}', f'v{t}'], [f'v{l}', f'v{t}'], prev, 'perm'),
            valu(f'v_add_f32 v{l}, v{l}, v{t}', [f'v{l}'], [f'v{l}', f'v{t}'], prev),
            valu(f'v_rcp_f32 v{inv}, v{l}', [f'v{inv}'], [f'v{l}'], prev, 'trans'),
            valu(f'v_cmp_nge_f32 vcc, s{sThr}, v{l}', ['vcc'], [f'v{l}'], prev),
            I(f's_cmp_lg_u64 vcc, 0', 'salu', [], ['vcc'], prev=prev), salu(f's_cselect_b32 s{sT2}, s{bit}, 0', prev),
            salu(f's_or_b32 s{sBad}, s{sBad}, s{sT2}', prev)]
def oepi(q, db, tb0, prev):
    o = O[q] + 16 * db; inv = INV[q]; r = []
    for hf in range(2):
        tb = tb0 + 8 * hf
        if CFG['pkm']:
            ip = inv & ~1; sel = 'op_sel_hi:[1,0]' if inv % 2 == 0 else 'op_sel:[0,1] op_sel_hi:[1,1]'
            for i in range(0, 8, 2):
                r.append(valu(f'v_pk_mul_f32 v[{tb+i}:{tb+i+1}], v[{o+8*hf+i}:{o+8*hf+i+1}], v[{ip}:{ip+1}] {sel}', [f'v{tb+i}', f'v{tb+i+1}'], [f'v{o+8*hf+i}', f'v{o+8*hf+i+1}', f'v{inv}'], prev))
            continue
        for i in range(8):
            r.append(valu(f'v_mul_f32 v{tb+i}, v{o+8*hf+i}, v{inv}', [f'v{tb+i}'], [f'v{o+8*hf+i}', f'v{inv}'], prev))
    for hf in range(2):
        tb = tb0 + 8 * hf
        for i in range(4):
            r.append(valu(f'v_cvt_pk_bf16_f32 v{tb+i}, v{tb+2*i}, v{tb+2*i+1}', [f'v{tb+i}'], [f'v{tb+2*i}', f'v{tb+2*i+1}'], prev))
    for hf in range(2):
        tb = tb0 + 8 * hf
        for e_ in range(2):
            c = 4 * db + 2 * hf + e_
            r.append(I(f'ds_write_b64 v{WA[c]}, {rr("v",tb+2*e_,2)}', 'dsw', [], R('v', tb + 2 * e_, 2) + [f'v{WA[c]}'], prev=prev))
    return r
def oflush(soff, soff4, prev, ab):
    rd = []; st = []
    for p in range(8):
        tb = ab + 4 * p
        rd.append(I(f'ds_read_b128 {rr("a",tb,4)}, v{XR+(p&3)} offset:{p*1024}', 'ds', R('a', tb, 4), [f'v{XR+(p&3)}'], prev=prev))
        if CFG['stv'] == 1:
            st.append(I(f'buffer_store_dwordx4 {rr("v",T1,4)}, v{VST}, s[{sO}:{sO+3}], s{soff4 if p >= 4 else soff} offen offset:{(p&3)*1024}{LDF[CFG["stf"]]}', 'st', [], R('a', tb, 4) + [f'v{VST}'], prev=prev, tag=('st',)))
        elif CFG['stv'] == 2:
            st.append(I(f'buffer_store_dword v{T1}, v{VST}, s[{sO}:{sO+3}], s{soff4 if p >= 4 else soff} offen offset:{(p&3)*1024}{LDF[CFG["stf"]]}', 'st', [], R('a', tb, 4) + [f'v{VST}'], prev=prev, tag=('st',)))
        elif CFG['stv'] == 3:
            st.append(I(f'buffer_store_dwordx2 {rr("a",tb,2)}, v{VST}, s[{sO}:{sO+3}], s{soff4 if p >= 4 else soff} offen offset:{(p&3)*1024}{LDF[CFG["stf"]]}', 'st', [], R('a', tb, 4) + [f'v{VST}'], prev=prev, tag=('st',)))
        else:
            st.append(I(f'buffer_store_dwordx4 {rr("a",tb,4)}, v{VST}, s[{sO}:{sO+3}], s{soff4 if p >= 4 else soff} offen offset:{(p&3)*1024}{LDF[CFG["stf"]]}', 'st', [], R('a', tb, 4) + [f'v{VST}'], prev=prev, tag=('st',)))
    return rd, st
def maxpro(q):
    s = S[q]; a, b = MT[q], NMC[q]
    m3 = lambda d, x, y, z: valu(f'v_max3_f32 v{d}, v{x}, v{y}, v{z}', [f'v{d}'], [f'v{x}', f'v{y}', f'v{z}'])
    r = [m3(a, s, s+1, s+2), m3(b, s+3, s+4, s+5), m3(a, a, s+6, s+7), m3(b, b, s+8, s+9), m3(a, a, s+10, s+11), m3(b, b, s+12, s+13),
         m3(a, a, s+14, s+15), valu(f'v_max_f32 v{a}, v{a}, v{b}', [f'v{a}'], [f'v{a}', f'v{b}']),
         valu(f'v_mov_b32 v{b}, v{a}', [f'v{b}'], [f'v{a}']),
         valu(f'v_permlane32_swap_b32 v{a}, v{b}', [f'v{a}', f'v{b}'], [f'v{a}', f'v{b}'], k='perm'),
         valu(f'v_max_f32 v{a}, v{a}, v{b}', [f'v{a}'], [f'v{a}', f'v{b}']),
         valu(f'v_mul_f32 v{b}, s{sNegC}, v{a}', [f'v{b}'], [f'v{a}'])]
    return r

def build_block():
    NG = 512
    gaps = [[] for _ in range(NG)]
    slots = [None] * NG
    def put(g, ins, prio):
        prev = g >= NG
        if prev:
            ins.prev = True; g -= NG
        gaps[g].append((prio, len(gaps[g]), ins))
    for j in range(16):
        b = 32 * j
        for t in range(8):
            slots[b + t] = mfma(S[0], ('a', AK + 4 * t), ('a', AQ[0] + 4 * t), c0=(t == 0))
            slots[b + 16 + t] = mfma(S[1], ('a', AK + 4 * t), ('a', AQ[1] + 4 * t), c0=(t == 0))
        for f in range(8):
            u, db = f >> 2, f & 3
            slots[b + 24 + f] = mfma(O[0] + 16 * db, ('a', AV + 4 * f), ('v', P[0] + 4 * u), c0=(j == 0 and u == 0))
            g = b + 40 + f
            m = mfma(O[1] + 16 * db, ('a', AV + 4 * f), ('v', P[1] + 4 * u), c0=(j == 0 and u == 0), prev=(g >= NG))
            slots[g % NG] = m
        for q in range(2):
            g0 = b + 9 + 16 * q; s = S[q]
            if j == 0:
                for x in maxpro(q): put(g0, x, 1)
            for r in range(16):
                put(g0 + r, valu(f'v_fma_f32 v{s+r}, v{s+r}, s{sC}, v{NMC[q]}', [f'v{s+r}'], [f'v{s+r}', f'v{NMC[q]}']), 2)
                put(g0 + r + 1, valu(f'v_exp_f32 v{s+r}, v{s+r}', [f'v{s+r}'], [f'v{s+r}'], k='trans'), 3)
                if j == 0 and r == 0:
                    put(g0 + r + 2, valu(f'v_mov_b32 v{L[q]}, v{s}', [f'v{L[q]}'], [f'v{s}']), 4)
                else:
                    put(g0 + r + 2, valu(f'v_add_f32 v{L[q]}, v{L[q]}, v{s+r}', [f'v{L[q]}'], [f'v{L[q]}', f'v{s+r}']), 4)
            for k in range(8):
                put(g0 + 3 + 2 * k, valu(f'v_cvt_pk_bf16_f32 v{P[q]+k}, v{s+2*k}, v{s+2*k+1}', [f'v{P[q]+k}'], [f'v{s+2*k}', f'v{s+2*k+1}']), 5)
        for k in range(16): put(b + 9 + k, vread(k >> 1, k & 1, j % 8), 0)
        for t in range(8): put(b + 24 + t, kread(t, (j + 1) % 8), 0)
        need = ('kv', (j + 1) % 16)
        if CFG['itst'] >= 0:
            put(b, I(f's_cmp_lg_u32 s{sB}, {CFG["itst"]}\ns_cbranch_scc1 L_is{j}\ns_memtime s[{60+2*j}:{61+2*j}]\nL_is{j}:', 'text'), -3)
        put(b, I('WAITVM', 'waitvm', tag=need), -2); put(b, I('s_barrier', 'bar'), -1)
        grp = dma_tile(j + 7)
        for i, g in enumerate(grp):
            for x in g: put(b + 1 + CFG['dsp'] * i, x, 0)
    QI1, QR1, QI0 = CFG['qi1'], CFG['qr1'], CFG['qi0']
    for i, g in enumerate(dma_q(1, sXW)):
        for x in g: put(32 * QI1 + 17 + 4 * (i % 4) + 32 * (i // 4), x, 0)
    put(32 * QR1 + 1, I('WAITVM', 'waitvm', tag=('q', 1)), -2)
    for t in range(8):
        put(32 * QR1 - 8 + t, valu(f'v_add_u32 v{T+t}, s{sXW}, v{KA+t}', [f'v{T+t}'], [f'v{KA+t}']), 6)
        put(32 * QR1 + 1 + t, I(f'ds_read_b128 {rr("a",AN+4*t,4)}, v{T+t}', 'ds', R('a', AN + 4 * t, 4), [f'v{T+t}']), 0)
    put(32 * QI0 + 1, I('s_waitcnt lgkmcnt(0)', 'waitl0'), -2)
    for i, g in enumerate(dma_q(0, sXW)):
        for x in g: put(32 * QI0 + 17 + 4 * (i % 4) + 32 * (i // 4), x, 0)
    b = 32 * 15
    put(b + 8, I('WAITVM', 'waitvm', tag=('q', 0)), -2)
    for t in range(8):
        put(b + t, valu(f'v_add_u32 v{T+t}, s{sXW}, v{KA+t}', [f'v{T+t}'], [f'v{KA+t}']), 6)
        put(b + 8 + t, I(f'ds_read_b128 {rr("a",AQ[0]+4*t,4)}, v{T+t}', 'ds', R('a', AQ[0] + 4 * t, 4), [f'v{T+t}']), 0)
    for r in range(32):
        put(b + 25 + (r // 4) + (r // 4) // 2, valu(f'v_accvgpr_mov_b32 a{AQ[1]+r}, a{AN+r}', [f'a{AQ[1]+r}'], [f'a{AN+r}']), 6)
    b = 32 * 15
    for i, x in enumerate(lfin(0, sBit0, False)): put(b + 27 + (0, 0, 1, 2, 2, 3, 3, 3)[i], x, 7)
    for i, x in enumerate(lfin(1, sBit1, True)): put(NG + 11 + (0, 0, 1, 2, 2, 3, 3, 3)[i], x, 7)
    for db in range(4):
        ins = oepi(0, db, T, True); g0 = NG + 1 + 6 * db - (1 if db else 0); n = 6 if db else 5
        if db == 3: n = 5
        for i, x in enumerate(ins): put(g0 + i * n // len(ins), x, 8)
        ins = oepi(1, db, T1, True); g0 = NG + CFG['o1s'] + 4 * db
        for i, x in enumerate(ins): put(g0 + i * 4 // len(ins), x, 8.5)
    for q, g0 in ((0, NG + 23), (1, NG + 41)):
        rd, st = oflush(sOprev1 if q else sOprev, sO14 if q else sO4, True, ARB + 32 * q)
        for p in range(8): put(g0 + (p // 4 if q == 0 else p // 2), rd[p], 7.5)
        for p in range(8): put(max(NG + CFG['stoff'] + CFG['ssp'] * (8 * q + p), g0 + 4 + p), st[p], {0: 9, 1: -0.5, 2: 99}[CFG['stp']])
    out = []; marks = []
    for g in range(NG):
        if g % 32 == 0: marks.append(len(out))
        out.append(slots[g])
        items = sorted(gaps[g], key=lambda e: (e[0], e[1]))
        head = [x for p, _, x in items if p <= 0]
        streams = {}
        last = [x for p, _, x in items if p >= 99]
        for p, _, x in items:
            if 0 < p < 99:
                key = 'sm' if p <= 5 else p
                streams.setdefault(key, []).append(x)
        out += head
        sl = [streams[k] for k in streams]
        if not CFG['rr']:
            for l_ in sl: out += l_
            out += last
            continue
        while any(sl):
            best = None
            for l_ in sl:
                if not l_: continue
                x = l_[0]; st = 0
                for dist, p in enumerate(reversed(out[-4:])):
                    if p.k in ('valu', 'trans', 'perm') and (p.d & (x.u | x.d if x.k == 'perm' else x.u)):
                        lat = 3 if (x.k == 'perm' or p.k in ('trans', 'perm') or 'vcc' in p.d) else 2
                        st = max(st, lat - dist)
                    if p.k == 'salu' and x.k == 'salu' and p.t.startswith('s_cmp'): pass
                if out[-1].k == 'salu' and out[-1].t.startswith('s_cmp_lg_u64') and x.t.startswith('s_cselect'): st = -100
                key = (st, -len(l_))
                if best is None or key < best[0]: best = (key, l_)
            out.append(best[1].pop(0))
        out += last
    return out, marks

def add_waits(seq, passes):
    out = []; ds = []; vm = []
    for ins in seq:
        if ins.k == 'waitvm':
            n = None
            for i in range(len(vm) - 1, -1, -1):
                if vm[i] is not None and vm[i] == ins.tag:
                    n = len(vm) - 1 - i; break
            if n is None: n = 0
            w = I(f's_waitcnt vmcnt({min(n,63)})', 'wait', tag=('vm', ins, n), prev=ins.prev); out.append(w); continue
        if ins.k == 'waitl0':
            out.append(ins); ds = []; continue
        touched = ins.u | ins.d
        need = None
        for i, (pos, dst) in enumerate(ds):
            if dst & touched: need = i
        if need is not None:
            n = len(ds) - 1 - need
            recent = sum(1 for (pos, dst) in ds if pos > len(out) - CFG['lgk_window'])
            n = min(n, recent, 15)
            out.append(I(f's_waitcnt lgkmcnt({n})', 'wait', tag=('lgkm', ins, n), prev=ins.prev))
            ds = ds[len(ds) - n:] if n else []
        out.append(ins)
        if ins.k in ('ds', 'dsw'): ds.append((len(out), ins.d))
        if ins.k in ('vm', 'st'): vm.append(ins.tag)
        if ins.k == 'bar': pass
    return out

def states(x):
    if x.k == 'nop': return int(x.t.split()[1]) + 1
    return 1
def fix_hazards(seq, name):
    out = []; added = 0
    for ins in seq:
        if ins.k in ('label',): out.append(ins); continue
        req = 0; dist = 0
        for p in reversed(out):
            if dist >= 13: break
            if p.k == 'label': continue
            need = 0
            if p.k == 'mfma':
                if ins.k == 'mfma':
                    ab = ins.u
                    if p.d & ab: need = 12
                    elif (p.d & ins.c) and p.d != ins.c: need = 10
                    elif (p.d & ins.d) and not (p.d == ins.d and ins.c): need = 12
                elif ins.k in ('valu', 'trans', 'perm', 'st', 'ds', 'dsw', 'vm'):
                    if p.d & (ins.u | ins.d): need = 12
                    elif ins.k in ('valu', 'trans', 'perm') and (p.c & ins.d): need = 7
            elif p.k in ('valu', 'trans', 'perm'):
                if ins.k == 'mfma' and (p.d & (ins.u | ins.c)): need = 2
                if ins.k == 'perm' and (p.d & ins.u): need = max(need, 2)
                if p.k == 'trans' and ins.k in ('valu', 'perm', 'mfma', 'st', 'dsw') and (p.d & ins.u): need = max(need, 1)
                if p.k == 'perm' and (p.d & ins.u): need = max(need, 1)
                if ins.k == 'salu' and 'vcc' in p.d and 'vcc' in ins.u: need = max(need, 4)
            elif p.k in ('st', 'dsw'):
                if ins.k in ('valu', 'trans', 'perm') and (p.u & ins.d): need = 2
            elif p.k == 'salu' and 'm0' in p.t.split(',')[0] and ins.k == 'vm': need = 1
            req = max(req, need - dist)
            dist += states(p)
        if req > 0:
            out.append(I(f's_nop {req-1}', 'nop', prev=ins.prev)); added += 1
        out.append(ins)
    if added: print(f'; hazard nops added in {name}: {added}', file=sys.stderr)
    return out

def prologue_text(part=None):
    A = []; B = []; e = A.append
    e('s_cmp_ge_u32 s2, 256'); e('s_cbranch_scc1 L_end')
    e('s_load_dwordx4 s[4:7], s[0:1], 0'); e('s_load_dwordx4 s[48:51], s[0:1], 16')
    e('v_lshrrev_b32 v1, 6, v0'); e('v_and_b32 v0, 63, v0'); e('s_nop 0'); e(f'v_readfirstlane_b32 s{sWv}, v1')
    e('v_lshrrev_b32 v4, 4, v0'); e('v_and_b32 v6, 15, v0')
    for pp in range(4):
        e(f'v_add_u32 v7, {4*pp}, v4'); e('v_xor_b32 v7, v7, v6'); e('v_lshlrev_b32 v7, 4, v7')
        e(f'v_lshl_add_u32 v{QD+pp}, v4, 8, v7')
    e(f's_lshl_b32 s{sW2048}, s{sWv}, 11'); e(f's_lshl_b32 s{sW8192}, s{sWv}, 13'); e(f's_add_u32 s{sXW}, s{sW8192}, 131072')
    e(f's_and_b32 s{sX2}, s{sWv}, 1'); e(f's_add_u32 s{sX2}, s{sX2}, 6'); e(f's_lshl_b32 s{sX2}, s{sX2}, 13')
    e(f's_lshr_b32 s{sT}, s{sWv}, 1'); e(f's_lshl_b32 s{sT}, s{sT}, 16'); e(f's_add_u32 s{sX2}, s{sX2}, s{sT}')
    e(f's_lshl_b32 s{sT}, s{sWv}, 3'); e(f's_lshl_b32 s{sT3}, s{sWv}, 14')
    e(f'v_add_u32 v5, s{sT}, v4')
    e('v_and_b32 v7, 15, v5'); e('v_xor_b32 v7, v7, v6'); e('v_lshlrev_b32 v7, 4, v7'); e(f'v_lshl_add_u32 v{DK0}, v5, 8, v7')
    e('v_add_u32 v7, 4, v5'); e('v_and_b32 v7, 15, v7'); e('v_xor_b32 v7, v7, v6'); e('v_lshlrev_b32 v7, 4, v7'); e(f'v_lshl_add_u32 v{DK1}, v5, 8, v7')
    e('v_lshlrev_b32 v7, 2, v4'); e('v_xor_b32 v7, v7, v6'); e('v_lshlrev_b32 v7, 4, v7'); e(f'v_lshl_add_u32 v{DV}, v5, 8, v7')
    if CFG['pairmode'] == 1:
        e('s_lshr_b32 s3, s2, 4'); e('s_lshl_b32 s3, s3, 3'); e(f's_and_b32 s{sT}, s2, 7'); e(f's_add_u32 s3, s3, s{sT}')
        e(f's_lshr_b32 s{sHalf}, s2, 3'); e(f's_and_b32 s{sHalf}, s{sHalf}, 1')
    else:
        e('s_lshr_b32 s3, s2, 1'); e(f's_and_b32 s{sHalf}, s2, 1')
    if CFG['xor']: e(f's_mul_i32 s{sRot}, s{sHalf}, {CFG["xor"]*8192}')
    e(f's_lshl_b32 s{sHalf}, s{sHalf}, 16')
    e(f's_lshl_b32 s{sHead0}, s3, 17')
    if CFG['rot']:
        e(f's_lshr_b32 s{sRot}, s3, {CFG["rot"]-1}'); e(f's_and_b32 s{sRot}, s{sRot}, 15'); e(f's_lshl_b32 s{sRot}, s{sRot}, 13')
    e(f's_mov_b32 s{sHead}, s{sHead0}'); e(f's_add_u32 s{sHeadN}, s{sHead0}, 0x1000000')
    e(f's_add_u32 s{sQW}, s{sHead0}, s{sHalf}'); e(f's_add_u32 s{sQW}, s{sQW}, s{sT3}')
    srd = lambda srd, lo: [f's_mov_b32 s{srd}, s{lo}', f's_and_b32 s{srd+1}, s{lo+1}, 0xffff', f's_mov_b32 s{srd+2}, 0x4000000', f's_mov_b32 s{srd+3}, 0x20000']
    for r_, lo in ((sQ, 4), (sK, 6), (sV, 48), (sO, 50)):
        e(f's_mov_b32 s{r_+2}, 0x4000000'); e(f's_mov_b32 s{r_+3}, 0x20000')
    e('s_waitcnt lgkmcnt(0)')
    for r_, lo in ((sQ, 4), (sK, 6), (sV, 48), (sO, 50)):
        e(f's_mov_b32 s{r_}, s{lo}'); e(f's_and_b32 s{r_+1}, s{lo+1}, 0xffff')
    e = B.append if CFG['early'] else A.append
    e('v_and_b32 v2, 31, v0'); e('v_lshrrev_b32 v3, 5, v0')
    e('v_and_b32 v4, 15, v2')
    for t in range(8):
        e(f'v_add_u32 v5, {2*t}, v3'); e('v_xor_b32 v5, v5, v4'); e('v_lshlrev_b32 v5, 4, v5')
        e(f'v_lshl_add_u32 v{KA+t}, v2, 8, v5')
    e('v_lshlrev_b32 v6, 8, v2'); e('v_lshl_add_u32 v6, v3, 3, v6'); e(f'v_add_u32 v6, s{sXW}, v6')
    for c in range(16):
        e(f'v_xor_b32 v5, {c}, v4'); e(f'v_lshl_add_u32 v{WA[c]}, v5, 4, v6')
    e('v_bfe_u32 v4, v0, 2, 2')
    e('v_lshl_add_u32 v5, v3, 2, v4')
    e('v_lshlrev_b32 v5, 8, v5')
    e('v_bfe_u32 v6, v0, 4, 1'); e('v_lshl_add_u32 v5, v6, 5, v5')
    e('v_and_b32 v6, 3, v0'); e('v_lshl_add_u32 v5, v6, 3, v5')
    for db in range(4):
        e(f'v_xor_b32 v6, {db}, v4'); e('v_lshl_add_u32 v6, v6, 6, v5')
        e(f'v_add_u32 v{VB+db}, 0x10000, v6')
    e('v_lshlrev_b32 v7, 4, v0'); e(f'v_add_u32 v{VST}, s{sT3}, v7')
    for pp in range(4): e(f'v_add_u32 v{XR+pp}, s{sXW}, v{QD+pp}')
    e(f's_mov_b32 s{sO4}, {OOB:#x}'); e(f's_mov_b32 s{sO14}, {OOB:#x}')
    e(f's_mov_b32 s{sOprev}, {OOB:#x}'); e(f's_mov_b32 s{sOprev1}, {OOB:#x}')
    e(f's_mov_b32 s{sB}, 0'); e(f's_mov_b32 s{sBad}, 0'); e(f's_mov_b32 s{sBit0}, 1'); e(f's_mov_b32 s{sBit1}, 0')
    e(f's_mov_b32 s{sC}, {fbits(cval):#x}'); e(f's_mov_b32 s{sNegC}, {fbits(-cval):#x}')
    thr = -1.0 if CFG['force_slow'] else 2.0 ** CFG['thr_log2']
    e(f's_mov_b32 s{sThr}, {fbits(thr):#x}')
    return [I(t, 'text') for t in (B if part == 'B' else A)]

def prologue_seq(blk0):
    seq = []
    t0 = dma_tile(0)
    for x in [y for g in dma_q(0, sXW) for y in g] + t0[0] + t0[1]: seq.append(x)
    t0[1][-1].tag = ('k0',)
    for g in dma_q(1, sX2): seq += g
    seq += [salu(f's_add_u32 s{sT}, s{sHead}, 0')] if not CFG['xor'] else [salu(f's_add_u32 s{sT}, s{sHead}, s{sRot}')]
    seq += t0[2] + t0[3]
    for tl in range(1, 6):
        for g in dma_tile(tl): seq += g
    seq.append(salu(f's_add_u32 s{sQW}, s{sHeadN}, s{sHalf}')); seq.append(salu(f's_add_u32 s{sQW}, s{sQW}, s{sT3}'))
    seq += prologue_text('B')
    for t in range(8):
        seq.append(valu(f'v_add_u32 v{T+t}, s{sXW}, v{KA+t}', [f'v{T+t}'], [f'v{KA+t}']))
        seq.append(valu(f'v_add_u32 v{T+8+t}, s{sX2}, v{KA+t}', [f'v{T+8+t}'], [f'v{KA+t}']))
    seq.append(I('WAITVM', 'waitvm', tag=('k0',))); seq.append(I('s_barrier', 'bar'))
    for t in range(8):
        seq.append(I(f'ds_read_b128 {rr("a",AQ[0]+4*t,4)}, v{T+t}', 'ds', R('a', AQ[0] + 4 * t, 4), [f'v{T+t}']))
        seq.append(kread(t, 0))
    g = -1
    for x in blk0:
        if x.k == 'mfma':
            g += 1
            if g == 24:
                seq.append(I('WAITVM', 'waitvm', tag=('kv', 1))); seq.append(I('s_waitcnt lgkmcnt(0)', 'waitl0')); seq.append(I('s_barrier', 'bar'))
                for gg in dma_tile(6) + dma_tile(7): seq += gg
        if x.prev or x.k in ('waitvm', 'bar', 'vm', 'text') or (x.k in ('salu', 'nop') and not x.prev): continue
        seq.append(x)
        if x.k == 'mfma' and g == 7:
            seq.append(I('WAITVM', 'waitvm', tag=('kv', 0))); seq.append(I('s_barrier', 'bar'))
            for t in range(8):
                seq.append(I(f'ds_read_b128 {rr("a",AQ[1]+4*t,4)}, v{T+8+t}', 'ds', R('a', AQ[1] + 4 * t, 4), [f'v{T+8+t}']))
    return seq

def stamp(i):
    return [f's_memtime s[{60+2*i}:{61+2*i}]', 's_waitcnt lgkmcnt(0)'] if CFG['stamps'] else []
def blockend():
    return [salu(f's_add_u32 s{sOprev}, s{sHead}, s{sHalf}'), salu(f's_add_u32 s{sOprev1}, s{sOprev}, 8192'),
            salu(f's_mov_b32 s{sHead}, s{sHeadN}'),
            salu(f's_add_u32 s{sB}, s{sB}, 1'),
            salu(f's_add_u32 s{sHeadN}, s{sHeadN}, 0x1000000'),
            salu(f's_cmp_ge_u32 s{sB}, 3'), salu(f's_cselect_b32 s{sHeadN}, {OOB:#x}, s{sHeadN}'),
            salu(f's_add_u32 s{sQW}, s{sHeadN}, s{sHalf}'), salu(f's_add_u32 s{sQW}, s{sQW}, s{sT3}'),
            salu(f's_add_u32 s{sO4}, s{sOprev}, 4096'), salu(f's_add_u32 s{sO14}, s{sOprev1}, 4096'),
            salu(f's_lshl_b32 s{sT2}, s{sB}, 1'),
            salu(f's_lshl_b32 s{sBit0}, 1, s{sT2}'), salu(f's_lshr_b32 s{sBit1}, s{sBit0}, 1'),
            salu(f's_cmp_lt_u32 s{sB}, 4')]

def slow_text():
    A = []; e = A.append
    e('s_waitcnt vmcnt(0) lgkmcnt(0)'); e('s_barrier')
    e(f's_cmp_eq_u32 s{sBad}, 0'); e('s_cbranch_scc1 L_end')
    G = T; M = MT[0]; N = NMC[0]; Ls = L[0]; s = S[0]; VT = T + 4
    e(f'v_subrev_u32 v{T+8}, s{sW2048}, v{DV}')
    for db in range(4): e(f'v_add_u32 v{VT+db}, s{sW8192}, v{VB+db}')
    e(f'v_mbcnt_lo_u32_b32 v{G}, -1, 0'); e(f'v_mbcnt_hi_u32_b32 v{G}, -1, v{G}')
    e(f'v_lshrrev_b32 v{G+1}, 5, v{G}'); e(f'v_and_b32 v{G}, 31, v{G}'); e(f'v_lshlrev_b32 v{G}, 8, v{G}'); e(f'v_lshl_add_u32 v{G}, v{G+1}, 4, v{G}')
    e(f's_mov_b32 s{sIdx}, 0')
    e('L_slow_loop:')
    e(f's_lshr_b32 s{sT}, s{sBad}, s{sIdx}'); e(f's_and_b32 s{sT}, s{sT}, 1'); e(f's_cmp_eq_u32 s{sT}, 0'); e('s_cbranch_scc1 L_slow_next')
    e(f's_lshr_b32 s{sT}, s{sIdx}, 1'); e(f's_lshl_b32 s{sT}, s{sT}, 24'); e(f's_add_u32 s{sHead}, s{sHead0}, s{sT}')
    e(f's_and_b32 s{sT}, s{sIdx}, 1'); e(f's_lshl_b32 s{sT}, s{sT}, 13'); e(f's_add_u32 s{sOcur}, s{sHead}, s{sHalf}'); e(f's_add_u32 s{sOcur}, s{sOcur}, s{sT}')
    e(f's_lshl_b32 s{sT}, s{sWv}, 14'); e(f's_add_u32 s{sT}, s{sT}, s{sOcur}')
    for t in range(8): e(f'buffer_load_dwordx4 {rr("a",AQ[0]+4*t,4)}, v{G}, s[{sQ}:{sQ+3}], s{sT} offen offset:{32*t}')
    e(f'v_mov_b32 v{M}, 0xff800000')
    def ktile():
        e(f's_lshl_b32 s{sT}, s{sTile}, 13'); e(f's_add_u32 s{sT}, s{sT}, s{sHead}')
        for t in range(8): e(f'buffer_load_dwordx4 {rr("a",AK+4*t,4)}, v{G}, s[{sK}:{sK+3}], s{sT} offen offset:{32*t}')
    def qk():
        e('s_waitcnt vmcnt(0)')
        for t in range(8): e(mfma(s, ('a', AK + 4 * t), ('a', AQ[0] + 4 * t), c0=(t == 0)).t)
        e('s_nop 15')
    e(f's_mov_b32 s{sTile}, 0'); e('L_slow_p1:')
    ktile(); qk()
    for r in range(0, 16, 2): e(f'v_max3_f32 v{M}, v{M}, v{s+r}, v{s+r+1}')
    e(f's_add_u32 s{sTile}, s{sTile}, 1'); e(f's_cmp_lt_u32 s{sTile}, 16'); e('s_cbranch_scc1 L_slow_p1')
    e(f'v_mov_b32 v{N}, v{M}'); e('s_nop 1'); e(f'v_permlane32_swap_b32 v{M}, v{N}'); e('s_nop 1'); e(f'v_max_f32 v{M}, v{M}, v{N}')
    e(f'v_mul_f32 v{N}, s{sNegC}, v{M}'); e(f'v_mov_b32 v{Ls}, 0')
    for r in range(64): e(f'v_mov_b32 v{O[0]+r}, 0')
    e(f's_mov_b32 s{sTile}, 0'); e('L_slow_p2:')
    ktile()
    e(f's_add_u32 m0, s{sW8192}, 65536'); e('s_nop 0')
    for p in range(4): e(f'buffer_load_dwordx4 v{T+8}, s[{sV}:{sV+3}], s{sT} offen offset:{1024*p} lds')
    e(f's_add_u32 m0, s{sW8192}, {65536+4096}'); e(f's_add_u32 s{sT}, s{sT}, 4096')
    for p in range(4): e(f'buffer_load_dwordx4 v{T+8}, s[{sV}:{sV+3}], s{sT} offen offset:{1024*p} lds')
    qk()
    for r in range(16): e(f'v_fma_f32 v{s+r}, v{s+r}, s{sC}, v{N}')
    for r in range(16): e(f'v_exp_f32 v{s+r}, v{s+r}')
    e('s_nop 0')
    for r in range(16): e(f'v_add_f32 v{Ls}, v{Ls}, v{s+r}')
    for k in range(8): e(f'v_cvt_pk_bf16_f32 v{P[0]+k}, v{s+2*k}, v{s+2*k+1}')
    for f in range(8):
        for sec in range(2):
            e(f'ds_read_b64_tr_b16 {rr("a",AV+4*f+2*sec,2)}, v{VT+(f&3)} offset:{(f>>2)*4096+sec*2048}')
    e('s_waitcnt lgkmcnt(0)')
    for f in range(8): e(mfma(O[0] + 16 * (f & 3), ('a', AV + 4 * f), ('v', P[0] + 4 * (f >> 2))).t)
    e(f's_add_u32 s{sTile}, s{sTile}, 1'); e(f's_cmp_lt_u32 s{sTile}, 16'); e('s_cbranch_scc1 L_slow_p2')
    e('s_nop 15')
    e(f'v_mov_b32 v{M}, v{Ls}'); e('s_nop 1'); e(f'v_permlane32_swap_b32 v{Ls}, v{M}'); e('s_nop 1'); e(f'v_add_f32 v{Ls}, v{Ls}, v{M}')
    e(f'v_rcp_f32 v{INV[0]}, v{Ls}'); e('s_nop 1')
    sv = CFG.get('_x')
    seq = []
    global T_save
    for db in range(4): seq += oepi_slow(db)
    e(f's_add_u32 s{sO4}, s{sOcur}, 4096')
    rd, st = oflush(sOcur, sO4, False, ARB)
    seq += rd + [I('s_waitcnt lgkmcnt(0)', 'wait')] + st
    for x in fix_hazards(seq, 'slow-epi'): e(x.t)
    e('s_waitcnt vmcnt(0)')
    e('L_slow_next:')
    e(f's_add_u32 s{sIdx}, s{sIdx}, 1'); e(f's_cmp_lt_u32 s{sIdx}, 8'); e('s_cbranch_scc1 L_slow_loop')
    return [I(t, 'text') for t in A]
def oepi_slow(db): return oepi(0, db, S[1], False)

def main():
    blk, marks = build_block()
    def filt(l):
        if CFG['nodma']: l = [x for x in l if x.k not in ('vm', 'st')]
        if CFG['novalu'] == 1: l = [x for x in l if x.k not in ('valu', 'trans', 'perm')]
        if CFG['nomfma']: l = [x for x in l if x.k != 'mfma']
        if CFG['nost']: l = [x for x in l if x.k != 'st']
        if CFG['nolds']: l = [x for x in l if x.k not in ('ds', 'dsw')]
        return l
    it0 = blk[:marks[1]]; rest = filt(blk[marks[1]:]);
    blk2, _ = build_block()
    pro = prologue_seq(blk2[:marks[1]])
    it0 = filt(it0)
    blk = it0 + rest
    be = blockend()
    entry = I('L_it1:', 'label')
    full = add_waits(pro + rest + be + it0 + rest + be + it0 + rest + be, 1)
    wm = {}
    for x in full:
        if x.k == 'wait' and x.tag:
            key = (x.tag[0], id(x.tag[1])); wm[key] = min(wm.get(key, 99), x.tag[2])
    def apply(l):
        o = []
        for x in l:
            if x.k == 'waitvm':
                o.append(I(f's_waitcnt vmcnt({min(wm[("vm", id(x))], 63)})', 'wait', prev=x.prev)); continue
            if ('lgkm', id(x)) in wm: o.append(I(f's_waitcnt lgkmcnt({wm[("lgkm", id(x))]})', 'wait', prev=x.prev))
            o.append(x)
        return o
    pro_w = apply(pro); it0_w = apply(it0); rest_w = apply(rest + be)
    body = it0_w + rest_w
    mk = I('', 'label')
    a1 = fix_hazards(pro_w + [mk] + rest_w[:40], 'pro'); pro_f = a1[:a1.index(mk)]; r_a = a1[a1.index(mk) + 1:]
    mk2 = I('', 'label'); mk3 = I('', 'label')
    a2 = fix_hazards(rest_w[-60:] + [mk2] + it0_w + [mk3] + rest_w, 'steady')
    it0_f = a2[a2.index(mk2) + 1:a2.index(mk3)]; rest_f = a2[a2.index(mk3) + 1:]
    chk = fix_hazards(pro_f[-40:] + rest_f[:60], 'entrycheck'); assert len(chk) == 100, len(chk)
    body_f = it0_f + [entry] + rest_f
    tail = [x for x in blk if x.prev and x.k not in ('waitvm',)]
    if CFG['tord']:
        sts = [x for x in tail if x.k == 'st']; oth = [x for x in tail if x.k != 'st']
        arb0 = set(R('a', ARB, 32))
        last0 = max(i for i, x in enumerate(oth) if x.k == 'ds' and (x.d & arb0))
        k = last0 + 1 + CFG['tord']
        tail = oth[:k] + sts[:8] + oth[k:] + sts[8:]
    tail_w = add_waits(tail, 1)
    mark3 = I('', 'label')
    t2 = fix_hazards(body[-60:] + [mark3] + [I('s_waitcnt lgkmcnt(0)', 'wait')] + tail_w, 'tail')
    tail_f = t2[t2.index(mark3) + 1:]
    out = []
    hdr = open('standalone__gqa_softmax__near_ridge.s.ref').read().split('\n')
    name = 'standalone__gqa_softmax__near_ridge_kernel'
    for ln in hdr:
        if ln.startswith('; @launch'): out.append('; @launch grid=(256,1,1) block=(256,1,1) lds=163840')
        elif ln.startswith(';'): out.append(ln)
        else: break
    out += ['.amdgcn_target "amdgcn-amd-amdhsa--gfx950"', '.text', f'.globl {name}', '.p2align 8', f'.type {name},@function', f'{name}:']
    out += stamp(0) + (['s_memrealtime s[80:81]'] if CFG['stamps'] else [])
    out += [x.t for x in prologue_text()]
    out += [x.t for x in pro_f]
    out.append('s_nop 0' if CFG.get('pad') else '.p2align 3' if False else '')
    out += stamp(1)
    out.append('s_branch L_it1')
    out.append('L_loop:')
    out += [x.t for x in body_f]
    if CFG['stamps']:
        out += ['s_cselect_b32 s3, 1, 0', 's_memtime s[84:85]', 's_waitcnt lgkmcnt(0)']
        for b in range(4): out += [f's_cmp_eq_u32 s{sB}, {b+1}', f's_cselect_b32 s{64+2*b}, s84, s{64+2*b}']
        out += ['s_cmp_eq_u32 s3, 1']
    out.append('s_cbranch_scc1 L_loop')
    out += [x.t for x in tail_f]
    if CFG['stamps']:
        out += ['s_waitcnt vmcnt(0)'] + stamp(6) + ['s_memrealtime s[82:83]', 's_load_dwordx2 s[86:87], s[0:1], 32', 's_waitcnt lgkmcnt(0)',
                f's_cmp_lg_u32 s2, {CFG["stampwg"]}', 's_cbranch_scc1 L_nost', f's_cmp_lg_u32 s{sWv}, 0', 's_cbranch_scc1 L_nost',
                's_mov_b32 s88, s86', 's_and_b32 s89, s87, 0xffff', 's_mov_b32 s90, 256', 's_mov_b32 s91, 0x20000', 'v_mov_b32 v1, 0']
        for i, r in enumerate([62, 64, 66, 68, 70, 72]):
            out += [f's_sub_u32 s3, s{r}, s60', 'v_mov_b32 v2, s3', f'buffer_store_dword v2, v1, s[88:91], 0 offen offset:{4*i}']
        out += ['s_sub_u32 s3, s82, s80', 'v_mov_b32 v2, s3', 'buffer_store_dword v2, v1, s[88:91], 0 offen offset:24', 's_waitcnt vmcnt(0)', 'L_nost:']
    if CFG['itst'] >= 0 and CFG['wgst']:
        out += ['s_waitcnt vmcnt(0) lgkmcnt(0)', 's_memtime s[92:93]', 's_waitcnt lgkmcnt(0)']
    elif CFG['itst'] >= 0:
        out += ['s_waitcnt vmcnt(0) lgkmcnt(0)', 's_memtime s[92:93]', 's_load_dwordx2 s[96:97], s[0:1], 32', 's_waitcnt lgkmcnt(0)',
                f's_cmp_lg_u32 s2, {CFG["stampwg"]}', 's_cbranch_scc1 L_nost', f's_cmp_lg_u32 s{sWv}, 0', 's_cbranch_scc1 L_nost',
                's_and_b32 s97, s97, 0xffff', 's_mov_b32 s98, 256', 's_mov_b32 s99, 0x20000', 'v_mov_b32 v1, 0']
        for i in range(16):
            nxt = 62 + 2 * i
            out += [f's_sub_u32 s3, s{nxt}, s{60+2*i}', 'v_mov_b32 v2, s3', f'buffer_store_dword v2, v1, s[96:99], 0 offen offset:{4*i}']
        out += ['s_waitcnt vmcnt(0)', 'L_nost:']
    if CFG['wgst'] and CFG['itst'] >= 0:
        out += ['s_load_dwordx2 s[96:97], s[0:1], 40', 's_waitcnt lgkmcnt(0)', f's_cmp_lg_u32 s{sWv}, 0', 's_cbranch_scc1 L_nost3',
                's_and_b32 s97, s97, 0xffff', 's_mov_b32 s98, 0x10000', 's_mov_b32 s99, 0x20000', 's_lshl_b32 s3, s2, 6', 's_add_u32 s3, s3, 16384', 'v_mov_b32 v1, s3']
        for i in range(16):
            out += [f's_sub_u32 s3, s{62+2*i}, s{60+2*i}', 'v_mov_b32 v2, s3', f'buffer_store_dword v2, v1, s[96:99], 0 offen offset:{4*i}']
        out += ['s_waitcnt vmcnt(0)', 'L_nost3:']
    elif CFG['wgst']:
        out += ['s_load_dwordx2 s[88:89], s[0:1], 40', 's_waitcnt lgkmcnt(0)', f's_cmp_lg_u32 s{sWv}, 0', 's_cbranch_scc1 L_nost2',
                's_and_b32 s89, s89, 0xffff', 's_mov_b32 s90, 0x10000', 's_mov_b32 s91, 0x20000', 's_lshl_b32 s3, s2, 6', 'v_mov_b32 v1, s3']
        vals = ['s80', 's82', ('s72', 's60'), ('s62', 's60'), ('s64', 's60'), ('s66', 's60'), ('s68', 's60'), ('s70', 's60'), ('s72', 's60')]
        for i, r in enumerate(vals):
            out += ([f's_sub_u32 s3, {r[0]}, {r[1]}', 'v_mov_b32 v2, s3'] if isinstance(r, tuple) else [f'v_mov_b32 v2, {r}']) + [f'buffer_store_dword v2, v1, s[88:91], 0 offen offset:{4*i}']
        out += ['s_waitcnt vmcnt(0)', 'L_nost2:']
    out += [x.t for x in slow_text()]
    out += ['L_end:', 's_endpgm', '.section .rodata,"a"', '.p2align 6', f'.amdhsa_kernel {name}',
            '  .amdhsa_next_free_vgpr 512', '  .amdhsa_next_free_sgpr 102', '  .amdhsa_accum_offset 256',
            '  .amdhsa_group_segment_fixed_size 0', '  .amdhsa_kernarg_size 48', '  .amdhsa_user_sgpr_count 2',
            '  .amdhsa_user_sgpr_kernarg_segment_ptr 1', '  .amdhsa_system_sgpr_workgroup_id_x 1', '.end_amdhsa_kernel']
    open(sys.argv[1], 'w').write('\n'.join(o for o in out if o != '') + '\n')
    n = lambda k: sum(1 for x in body_f if x.k == k)
    print('body instrs', len(body_f), {k: n(k) for k in ('mfma', 'valu', 'trans', 'perm', 'ds', 'vm', 'st', 'salu', 'wait', 'nop', 'bar')}, file=sys.stderr)
main()
```

```python
import sys, struct, math
CFG = dict(anq=0, k1s=0, wsp=0, e0a=1, e0n=22, e1n=17, bar2=0, hsw=0, pkm=0, early=0, tord=0, stp=0, stv=0, stoff=27, dsp=4, ssp=4, o1s=24, peel=1, rr=1, m16=0, wgst=0, qi1=2, qr1=8, qi0=9, xor=0, ldf=0, stf=0, nomfma=0, nost=0, itst=-1, nodma=0, novalu=0, nolds=0, rot=0, stamps=0, stampwg=0, force_slow=0, thr_log2=30, lgk_window=18, pairmode=1)
for a in sys.argv[2:]:
    k, v = a.split('='); CFG[k] = int(v)

LDF = ['', ' nt', ' sc1', ' sc0 sc1', ' sc0', ' sc0 sc1 nt', ' sc1 nt']
class I:
    __slots__ = ('t', 'k', 'd', 'u', 'tag', 'prev', 'c')
    def __init__(s, t, k, d=(), u=(), tag=None, prev=False, c=()):
        s.t = t; s.k = k; s.d = set(d); s.u = set(u); s.tag = tag; s.prev = prev; s.c = set(c)
def R(p, a, n=1): return [f'{p}{a+i}' for i in range(n)]
def rr(p, a, n): return f'{p}[{a}:{a+n-1}]' if n > 1 else f'{p}{a}'

O = [0, 64]; S = [128, 144]; P = [160, 168]
KA = 176; VB = 192; XR = 196
WA = [184,185,186,187,188,189,190,191,228,229,230,231,252,253,254,255]
T1 = 236
DK0 = 200; DK1 = 201; DV = 202; VST = 203; QD = 232
L = [204, 205]; INV = [206, 207]; NMC = [208, 209]; MT = [210, 211]
T = 212
AQ = [0, 32]; AK = 64; AV = 96; AN = 128; ARB = 160
sQ, sK, sV, sO = 8, 12, 16, 20
sW2048 = 24; sW8192 = 25; sHead = 26; sHeadN = 27; sQN = 28; sOprev = 29; sT = 30; sB = 31
sC = 32; sNegC = 33; sBad = 34; sBit0 = 35; sBit1 = 36; sT2 = 37; sHalf = 38; sOprev1 = 39; sThr = 40
sHead0 = 41; sIdx = 42; sTile = 43; sT3 = 44; sOcur = 45; sWv = 46; sRot = 47; sXW = 52; sQW = 53; sO4 = 54; sX2 = 55; sO14 = 56
OOB = 0x40000000
cval = math.log2(math.e) / math.sqrt(128.0)
def fbits(x): return struct.unpack('<I', struct.pack('<f', x))[0]

def mfma(dst, a, b, c0=False, prev=False):
    ctext = '0' if c0 else rr('v', dst, 16)
    if CFG['m16']:
        c1 = '0' if c0 else rr('v', dst, 4); c2 = '0' if c0 else rr('v', dst + 8, 4)
        return I(f'v_mfma_f32_16x16x32_bf16 {rr("v",dst,4)}, {rr(a[0],a[1],4)}, {rr(b[0],b[1],4)}, {c1}\nv_mfma_f32_16x16x32_bf16 {rr("v",dst+8,4)}, {rr(a[0],a[1],4)}, {rr(b[0],b[1],4)}, {c2}', 'mfma',
             R('v', dst, 16), R(a[0], a[1], 4) + R(b[0], b[1], 4), prev=prev, c=([] if c0 else R('v', dst, 16)))
    return I(f'v_mfma_f32_32x32x16_bf16 {rr("v",dst,16)}, {rr(a[0],a[1],4)}, {rr(b[0],b[1],4)}, {ctext}', 'mfma',
             R('v', dst, 16), R(a[0], a[1], 4) + R(b[0], b[1], 4), prev=prev, c=([] if c0 else R('v', dst, 16)))
def valu(t, d, u, prev=False, k='valu'): return I(t, k, d, u, prev=prev)
def salu(t, prev=False): return I(t, 'salu', prev=prev)

def kaddr(pos): return (KA, pos * 8192)
def vaddr(pos): return (VB, pos * 8192)
def kread(t, pos):
    b, o = kaddr(pos)
    return I(f'ds_read_b128 {rr("a",AK+4*t,4)}, v{b+t} offset:{o}', 'ds', R('a', AK + 4 * t, 4), [f'v{b+t}'])
def vread(f, sec, pos):
    u, db = f >> 2, f & 3
    b, o = vaddr(pos)
    return I(f'ds_read_b64_tr_b16 {rr("a",AV+4*f+2*sec,2)}, v{b+db} offset:{o+u*4096+sec*2048}', 'ds',
             R('a', AV + 4 * f + 2 * sec, 2), [f'v{b+db}'])
def ld(v, srd, off, tag): return I(f'buffer_load_dwordx4 v{v}, s[{srd}:{srd+3}], s{sT} offen offset:{off}{LDF[CFG["ldf"]]} lds', 'vm', [], [f'v{v}'], tag=tag)
def dma_tile(tile):
    nb = tile >= 16; tt = tile % 16; pos = tt % 8
    kb = pos * 8192; vb = 65536 + pos * 8192
    src = sHeadN if nb else sHead
    tag = ('kv', tt)
    if CFG['xor']: pre = [salu(f's_xor_b32 s{sT}, s{sRot}, {tt*8192}'), salu(f's_add_u32 m0, s{sW2048}, {kb}'), salu(f's_add_u32 s{sT}, s{sT}, s{src}')]
    else: pre = [salu(f's_add_u32 m0, s{sW2048}, {kb}'), salu(f's_add_u32 s{sT}, s{src}, {tt*8192}')]
    return [pre + [ld(DK0, sK, 0, tag)], [ld(DK1, sK, 1024, tag)],
            [salu(f's_add_u32 m0, s{sW2048}, {vb}'), I('s_nop 0', 'nop'), ld(DV, sV, 0, tag)], [ld(DV, sV, 1024, tag)]]
def dma_q(qb, ldsbase):
    tag = ('q', qb); g = []
    for p in range(8):
        pre = []
        if p % 4 == 0:
            pre = [salu(f's_add_u32 m0, s{ldsbase}, {(p>>2)*4096}'), salu(f's_add_u32 s{sT}, s{sQW}, {qb*8192+(p>>2)*4096}')]
        g.append(pre + [ld(QD + (p & 3), sQ, (p & 3) * 1024, tag)])
    return g

def lfin(q, bit, prev):
    l, inv, t = L[q], INV[q], MT[q]
    return [valu(f'v_mov_b32 v{t}, v{l}', [f'v{t}'], [f'v{l}'], prev),
            valu(f'v_permlane32_swap_b32 v{l}, v{t}', [f'v{l}', f'v{t}'], [f'v{l}', f'v{t}'], prev, 'perm'),
            valu(f'v_add_f32 v{l}, v{l}, v{t}', [f'v{l}'], [f'v{l}', f'v{t}'], prev),
            valu(f'v_rcp_f32 v{inv}, v{l}', [f'v{inv}'], [f'v{l}'], prev, 'trans'),
            valu(f'v_cmp_nge_f32 vcc, s{sThr}, v{l}', ['vcc'], [f'v{l}'], prev),
            I(f's_cmp_lg_u64 vcc, 0', 'salu', [], ['vcc'], prev=prev), salu(f's_cselect_b32 s{sT2}, s{bit}, 0', prev),
            salu(f's_or_b32 s{sBad}, s{sBad}, s{sT2}', prev)]
def oepi(q, db, tb0, prev):
    o = O[q] + 16 * db; inv = INV[q]; r = []
    for hf in range(2):
        tb = tb0 + 8 * hf
        if CFG['pkm']:
            ip = inv & ~1; sel = 'op_sel_hi:[1,0]' if inv % 2 == 0 else 'op_sel:[0,1] op_sel_hi:[1,1]'
            for i in range(0, 8, 2):
                r.append(valu(f'v_pk_mul_f32 v[{tb+i}:{tb+i+1}], v[{o+8*hf+i}:{o+8*hf+i+1}], v[{ip}:{ip+1}] {sel}', [f'v{tb+i}', f'v{tb+i+1}'], [f'v{o+8*hf+i}', f'v{o+8*hf+i+1}', f'v{inv}'], prev))
            continue
        for i in range(8):
            r.append(valu(f'v_mul_f32 v{tb+i}, v{o+8*hf+i}, v{inv}', [f'v{tb+i}'], [f'v{o+8*hf+i}', f'v{inv}'], prev))
    for hf in range(2):
        tb = tb0 + 8 * hf
        for i in range(4):
            r.append(valu(f'v_cvt_pk_bf16_f32 v{tb+i}, v{tb+2*i}, v{tb+2*i+1}', [f'v{tb+i}'], [f'v{tb+2*i}', f'v{tb+2*i+1}'], prev))
    for hf in range(2):
        tb = tb0 + 8 * hf
        for e_ in range(2):
            c = 4 * db + 2 * hf + e_
            r.append(I(f'ds_write_b64 v{WA[c]}, {rr("v",tb+2*e_,2)}', 'dsw', [], R('v', tb + 2 * e_, 2) + [f'v{WA[c]}'], prev=prev))
    return r
def oepi_all(q, tb0, prev):
    seq = []; pend = []
    for db in range(4):
        ins = oepi(q, db, tb0, prev)
        mul, cvt, wr = ins[:16], ins[16:24], ins[24:]
        for hf in range(2):
            work = mul[8*hf:8*hf+8] + cvt[4*hf:4*hf+4]
            seq += work[:2] + pend[:1] + work[2:8] + pend[1:] + work[8:]
            pend = wr[2*hf:2*hf+2]
    return seq + pend
def oflush(soff, soff4, prev, ab):
    rd = []; st = []
    for p in range(8):
        tb = ab + 4 * p
        if CFG['hsw'] and (p & 2):
            rd.append([I(f'ds_read_b64 {rr("a",tb,2)}, v{XR+(p&3)} offset:{p*1024+8}', 'ds', R('a', tb, 2), [f'v{XR+(p&3)}'], prev=prev),
                       I(f'ds_read_b64 {rr("a",tb+2,2)}, v{XR+(p&3)} offset:{p*1024}', 'ds', R('a', tb + 2, 2), [f'v{XR+(p&3)}'], prev=prev)])
        else:
            rd.append([I(f'ds_read_b128 {rr("a",tb,4)}, v{XR+(p&3)} offset:{p*1024}', 'ds', R('a', tb, 4), [f'v{XR+(p&3)}'], prev=prev)])
        if CFG['stv'] == 1:
            st.append(I(f'buffer_store_dwordx4 {rr("v",T1,4)}, v{VST}, s[{sO}:{sO+3}], s{soff4 if p >= 4 else soff} offen offset:{(p&3)*1024}{LDF[CFG["stf"]]}', 'st', [], R('a', tb, 4) + [f'v{VST}'], prev=prev, tag=('st',)))
        elif CFG['stv'] == 2:
            st.append(I(f'buffer_store_dword v{T1}, v{VST}, s[{sO}:{sO+3}], s{soff4 if p >= 4 else soff} offen offset:{(p&3)*1024}{LDF[CFG["stf"]]}', 'st', [], R('a', tb, 4) + [f'v{VST}'], prev=prev, tag=('st',)))
        elif CFG['stv'] == 3:
            st.append(I(f'buffer_store_dwordx2 {rr("a",tb,2)}, v{VST}, s[{sO}:{sO+3}], s{soff4 if p >= 4 else soff} offen offset:{(p&3)*1024}{LDF[CFG["stf"]]}', 'st', [], R('a', tb, 4) + [f'v{VST}'], prev=prev, tag=('st',)))
        else:
            st.append(I(f'buffer_store_dwordx4 {rr("a",tb,4)}, v{VST}, s[{sO}:{sO+3}], s{soff4 if p >= 4 else soff} offen offset:{(p&3)*1024}{LDF[CFG["stf"]]}', 'st', [], R('a', tb, 4) + [f'v{VST}'], prev=prev, tag=('st',)))
    return rd, st
def maxpro(q):
    s = S[q]; a, b = MT[q], NMC[q]
    m3 = lambda d, x, y, z: valu(f'v_max3_f32 v{d}, v{x}, v{y}, v{z}', [f'v{d}'], [f'v{x}', f'v{y}', f'v{z}'])
    r = [m3(a, s, s+1, s+2), m3(b, s+3, s+4, s+5), m3(a, a, s+6, s+7), m3(b, b, s+8, s+9), m3(a, a, s+10, s+11), m3(b, b, s+12, s+13),
         m3(a, a, s+14, s+15), valu(f'v_max_f32 v{a}, v{a}, v{b}', [f'v{a}'], [f'v{a}', f'v{b}']),
         valu(f'v_mov_b32 v{b}, v{a}', [f'v{b}'], [f'v{a}']),
         valu(f'v_permlane32_swap_b32 v{a}, v{b}', [f'v{a}', f'v{b}'], [f'v{a}', f'v{b}'], k='perm'),
         valu(f'v_max_f32 v{a}, v{a}, v{b}', [f'v{a}'], [f'v{a}', f'v{b}']),
         valu(f'v_mul_f32 v{b}, s{sNegC}, v{a}', [f'v{b}'], [f'v{a}'])]
    return r

def build_block():
    NG = 512
    gaps = [[] for _ in range(NG)]
    slots = [None] * NG
    def put(g, ins, prio):
        prev = g >= NG
        if prev:
            ins.prev = True; g -= NG
        gaps[g].append((prio, len(gaps[g]), ins))
    for j in range(16):
        b = 32 * j
        for t in range(8):
            slots[b + t] = mfma(S[0], ('a', AK + 4 * t), ('a', AQ[0] + 4 * t), c0=(t == 0))
            slots[b + 16 + t] = mfma(S[1], ('a', AK + 4 * t), ('a', (AN if (CFG['anq'] and j <= 7) else AQ[1]) + 4 * t), c0=(t == 0))
        for f in range(8):
            u, db = f >> 2, f & 3
            slots[b + 24 + f] = mfma(O[0] + 16 * db, ('a', AV + 4 * f), ('v', P[0] + 4 * u), c0=(j == 0 and u == 0))
            g = b + 40 + f
            m = mfma(O[1] + 16 * db, ('a', AV + 4 * f), ('v', P[1] + 4 * u), c0=(j == 0 and u == 0), prev=(g >= NG))
            slots[g % NG] = m
        for q in range(2):
            g0 = b + 9 + 16 * q; s = S[q]
            if j == 0:
                for x in maxpro(q): put(g0, x, 1)
            for r in range(16):
                put(g0 + r, valu(f'v_fma_f32 v{s+r}, v{s+r}, s{sC}, v{NMC[q]}', [f'v{s+r}'], [f'v{s+r}', f'v{NMC[q]}']), 2)
                put(g0 + r + 1, valu(f'v_exp_f32 v{s+r}, v{s+r}', [f'v{s+r}'], [f'v{s+r}'], k='trans'), 3)
                if j == 0 and r == 0:
                    put(g0 + r + 2, valu(f'v_mov_b32 v{L[q]}, v{s}', [f'v{L[q]}'], [f'v{s}']), 4)
                else:
                    put(g0 + r + 2, valu(f'v_add_f32 v{L[q]}, v{L[q]}, v{s+r}', [f'v{L[q]}'], [f'v{L[q]}', f'v{s+r}']), 4)
            for k in range(8):
                put(g0 + 3 + 2 * k, valu(f'v_cvt_pk_bf16_f32 v{P[q]+k}, v{s+2*k}, v{s+2*k+1}', [f'v{P[q]+k}'], [f'v{s+2*k}', f'v{s+2*k+1}']), 5)
        for k in range(16): put(b + 9 + k, vread(k >> 1, k & 1, j % 8), 0)
        for t in range(8): put(b + 24 + t, kread(t, (j + 1) % 8), 0)
        need = ('kv', (j + 1) % 16)
        if CFG['itst'] >= 0:
            put(b, I(f's_cmp_lg_u32 s{sB}, {CFG["itst"]}\ns_cbranch_scc1 L_is{j}\ns_memtime s[{60+2*j}:{61+2*j}]\nL_is{j}:', 'text'), -3)
        if CFG['bar2']:
            if j % 2 == 0:
                put(b, I('WAITVM', 'waitvm', tag=('kv', (j + 2) % 16)), -2); put(b, I('s_barrier', 'bar'), -1)
            grp = dma_tile(j + 6)
        else:
            put(b, I('WAITVM', 'waitvm', tag=need), -2); put(b, I('s_barrier', 'bar'), -1)
            grp = dma_tile(j + 7)
        for i, g in enumerate(grp):
            for x in g: put(b + 1 + CFG['dsp'] * i, x, 0)
    QI1, QR1, QI0 = CFG['qi1'], CFG['qr1'], CFG['qi0']
    for i, g in enumerate(dma_q(1, sXW)):
        for x in g: put(32 * QI1 + 17 + 4 * (i % 4) + 32 * (i // 4), x, 0)
    put(32 * QR1 + 1, I('WAITVM', 'waitvm', tag=('q', 1)), -2)
    for t in range(8):
        put(32 * QR1 - (32 if CFG['anq'] else 8) + t, valu(f'v_add_u32 v{T+t}, s{sXW}, v{KA+t}', [f'v{T+t}'], [f'v{KA+t}']), 6)
        put(32 * QR1 + 1 + t, I(f'ds_read_b128 {rr("a",AN+4*t,4)}, v{T+t}', 'ds', R('a', AN + 4 * t, 4), [f'v{T+t}']), 0)
    put(32 * QI0 + 1, I('s_waitcnt lgkmcnt(0)', 'waitl0'), -2)
    for i, g in enumerate(dma_q(0, sXW)):
        for x in g: put(32 * QI0 + 17 + 4 * (i % 4) + 32 * (i // 4), x, 0)
    b = 32 * 15
    put(b + 8, I('WAITVM', 'waitvm', tag=('q', 0)), -2)
    for t in range(8):
        put(b + t, valu(f'v_add_u32 v{T+t}, s{sXW}, v{KA+t}', [f'v{T+t}'], [f'v{KA+t}']), 6)
        put(b + 8 + t, I(f'ds_read_b128 {rr("a",AQ[0]+4*t,4)}, v{T+t}', 'ds', R('a', AQ[0] + 4 * t, 4), [f'v{T+t}']), 0)
    sl = [32 * j + g for j in range(2, 7) for g in (0, 2, 3, 4, 6, 7, 8)]
    for r in range(32):
        put(sl[r] if CFG['anq'] else b + 25 + (r // 4) + (r // 4) // 2, valu(f'v_accvgpr_mov_b32 a{AQ[1]+r}, a{AN+r}', [f'a{AQ[1]+r}'], [f'a{AN+r}']), 6)
    b = 32 * 15
    for i, x in enumerate(lfin(0, sBit0, False)): put(b + 27 + (0, 0, 1, 2, 2, 3, 3, 3)[i], x, 7)
    for i, x in enumerate(lfin(1, sBit1, True)): put(NG + 11 + (0, 0, 1, 2, 2, 3, 3, 3)[i], x, 7)
    if CFG['wsp']:
        ins = oepi_all(0, T, True)
        for i, x in enumerate(ins): put(NG + CFG['e0a'] + i * CFG['e0n'] // len(ins), x, 8)
        ins = oepi_all(1, T1, True)
        for i, x in enumerate(ins): put(NG + CFG['o1s'] + i * CFG['e1n'] // len(ins), x, 8.5)
    for db in range(4 if not CFG['wsp'] else 0):
        ins = oepi(0, db, T, True); g0 = NG + 1 + 6 * db - (1 if db else 0); n = 6 if db else 5
        if db == 3: n = 5
        for i, x in enumerate(ins): put(g0 + i * n // len(ins), x, 8)
        ins = oepi(1, db, T1, True); g0 = NG + CFG['o1s'] + 4 * db
        for i, x in enumerate(ins): put(g0 + i * 4 // len(ins), x, 8.5)
    for q, g0 in ((0, NG + 23), (1, NG + 41)):
        rd, st = oflush(sOprev1 if q else sOprev, sO14 if q else sO4, True, ARB + 32 * q)
        for p in range(8):
            for x in rd[p]: put(g0 + (p // 4 if q == 0 else p // 2), x, 7.5)
        for p in range(8): put(max(NG + CFG['stoff'] + CFG['ssp'] * (8 * q + p), g0 + 4 + p), st[p], {0: 9, 1: -0.5, 2: 99}[CFG['stp']])
    out = []; marks = []
    for g in range(NG):
        if g % 32 == 0: marks.append(len(out))
        out.append(slots[g])
        items = sorted(gaps[g], key=lambda e: (e[0], e[1]))
        head = [x for p, _, x in items if p <= 0]
        streams = {}
        last = [x for p, _, x in items if p >= 99]
        for p, _, x in items:
            if 0 < p < 99:
                key = 'sm' if p <= 5 else p
                streams.setdefault(key, []).append(x)
        out += head
        sl = [streams[k] for k in streams]
        if not CFG['rr']:
            for l_ in sl: out += l_
            out += last
            continue
        while any(sl):
            best = None
            for l_ in sl:
                if not l_: continue
                x = l_[0]; st = 0
                for dist, p in enumerate(reversed(out[-4:])):
                    if p.k in ('valu', 'trans', 'perm') and (p.d & (x.u | x.d if x.k == 'perm' else x.u)):
                        lat = 3 if (x.k == 'perm' or p.k in ('trans', 'perm') or 'vcc' in p.d) else 2
                        st = max(st, lat - dist)
                    if p.k == 'salu' and x.k == 'salu' and p.t.startswith('s_cmp'): pass
                if out[-1].k == 'salu' and out[-1].t.startswith('s_cmp_lg_u64') and x.t.startswith('s_cselect'): st = -100
                key = (st, -len(l_))
                if best is None or key < best[0]: best = (key, l_)
            out.append(best[1].pop(0))
        out += last
    return out, marks

def add_waits(seq, passes):
    out = []; ds = []; vm = []
    for ins in seq:
        if ins.k == 'waitvm':
            n = None
            for i in range(len(vm) - 1, -1, -1):
                if vm[i] is not None and vm[i] == ins.tag:
                    n = len(vm) - 1 - i; break
            if n is None: n = 0
            w = I(f's_waitcnt vmcnt({min(n,63)})', 'wait', tag=('vm', ins, n), prev=ins.prev); out.append(w); continue
        if ins.k == 'waitl0':
            out.append(ins); ds = []; continue
        touched = ins.u | ins.d
        need = None
        for i, (pos, dst) in enumerate(ds):
            if dst & touched: need = i
        if need is not None:
            n = len(ds) - 1 - need
            recent = sum(1 for (pos, dst) in ds if pos > len(out) - CFG['lgk_window'])
            n = min(n, recent, 15)
            out.append(I(f's_waitcnt lgkmcnt({n})', 'wait', tag=('lgkm', ins, n), prev=ins.prev))
            ds = ds[len(ds) - n:] if n else []
        out.append(ins)
        if ins.k in ('ds', 'dsw'): ds.append((len(out), ins.d))
        if ins.k in ('vm', 'st'): vm.append(ins.tag)
        if ins.k == 'bar': pass
    return out

def states(x):
    if x.k == 'nop': return int(x.t.split()[1]) + 1
    return 1
def fix_hazards(seq, name):
    out = []; added = 0
    for ins in seq:
        if ins.k in ('label',): out.append(ins); continue
        req = 0; dist = 0
        for p in reversed(out):
            if dist >= 13: break
            if p.k == 'label': continue
            need = 0
            if p.k == 'mfma':
                if ins.k == 'mfma':
                    ab = ins.u
                    if p.d & ab: need = 12
                    elif (p.d & ins.c) and p.d != ins.c: need = 10
                    elif (p.d & ins.d) and not (p.d == ins.d and ins.c): need = 12
                elif ins.k in ('valu', 'trans', 'perm', 'st', 'ds', 'dsw', 'vm'):
                    if p.d & (ins.u | ins.d): need = 12
                    elif ins.k in ('valu', 'trans', 'perm') and (p.c & ins.d): need = 7
            elif p.k in ('valu', 'trans', 'perm'):
                if ins.k == 'mfma' and (p.d & (ins.u | ins.c)): need = 2
                if ins.k == 'perm' and (p.d & ins.u): need = max(need, 2)
                if p.k == 'trans' and ins.k in ('valu', 'perm', 'mfma', 'st', 'dsw') and (p.d & ins.u): need = max(need, 1)
                if p.k == 'perm' and (p.d & ins.u): need = max(need, 1)
                if ins.k == 'salu' and 'vcc' in p.d and 'vcc' in ins.u: need = max(need, 4)
            elif p.k in ('st', 'dsw'):
                if ins.k in ('valu', 'trans', 'perm') and (p.u & ins.d): need = 2
            elif p.k == 'salu' and 'm0' in p.t.split(',')[0] and ins.k == 'vm': need = 1
            req = max(req, need - dist)
            dist += states(p)
        if req > 0:
            out.append(I(f's_nop {req-1}', 'nop', prev=ins.prev)); added += 1
        out.append(ins)
    if added: print(f'; hazard nops added in {name}: {added}', file=sys.stderr)
    return out

def prologue_text(part=None):
    A = []; B = []; e = A.append
    e('s_cmp_ge_u32 s2, 256'); e('s_cbranch_scc1 L_end')
    e('s_load_dwordx4 s[4:7], s[0:1], 0'); e('s_load_dwordx4 s[48:51], s[0:1], 16')
    e('v_lshrrev_b32 v1, 6, v0'); e('v_and_b32 v0, 63, v0'); e('s_nop 0'); e(f'v_readfirstlane_b32 s{sWv}, v1')
    e('v_lshrrev_b32 v4, 4, v0'); e('v_and_b32 v6, 15, v0')
    for pp in range(4):
        e(f'v_add_u32 v7, {4*pp}, v4'); e('v_xor_b32 v7, v7, v6'); e('v_lshlrev_b32 v7, 4, v7')
        e(f'v_lshl_add_u32 v{QD+pp}, v4, 8, v7')
    e(f's_lshl_b32 s{sW2048}, s{sWv}, 11'); e(f's_lshl_b32 s{sW8192}, s{sWv}, 13'); e(f's_add_u32 s{sXW}, s{sW8192}, 131072')
    e(f's_and_b32 s{sX2}, s{sWv}, 1'); e(f's_add_u32 s{sX2}, s{sX2}, 6'); e(f's_lshl_b32 s{sX2}, s{sX2}, 13')
    e(f's_lshr_b32 s{sT}, s{sWv}, 1'); e(f's_lshl_b32 s{sT}, s{sT}, 16'); e(f's_add_u32 s{sX2}, s{sX2}, s{sT}')
    e(f's_lshl_b32 s{sT}, s{sWv}, 3'); e(f's_lshl_b32 s{sT3}, s{sWv}, 14')
    e(f'v_add_u32 v5, s{sT}, v4')
    e('v_and_b32 v7, 15, v5'); e('v_xor_b32 v7, v7, v6'); e('v_lshlrev_b32 v7, 4, v7'); e(f'v_lshl_add_u32 v{DK0}, v5, 8, v7')
    e('v_add_u32 v7, 4, v5'); e('v_and_b32 v7, 15, v7'); e('v_xor_b32 v7, v7, v6'); e('v_lshlrev_b32 v7, 4, v7'); e(f'v_lshl_add_u32 v{DK1}, v5, 8, v7')
    e('v_lshlrev_b32 v7, 2, v4'); e('v_xor_b32 v7, v7, v6'); e('v_lshlrev_b32 v7, 4, v7'); e(f'v_lshl_add_u32 v{DV}, v5, 8, v7')
    if CFG['pairmode'] == 1:
        e('s_lshr_b32 s3, s2, 4'); e('s_lshl_b32 s3, s3, 3'); e(f's_and_b32 s{sT}, s2, 7'); e(f's_add_u32 s3, s3, s{sT}')
        e(f's_lshr_b32 s{sHalf}, s2, 3'); e(f's_and_b32 s{sHalf}, s{sHalf}, 1')
    else:
        e('s_lshr_b32 s3, s2, 1'); e(f's_and_b32 s{sHalf}, s2, 1')
    if CFG['xor']: e(f's_mul_i32 s{sRot}, s{sHalf}, {CFG["xor"]*8192}')
    e(f's_lshl_b32 s{sHalf}, s{sHalf}, 16')
    e(f's_lshl_b32 s{sHead0}, s3, 17')
    if CFG['rot']:
        e(f's_lshr_b32 s{sRot}, s3, {CFG["rot"]-1}'); e(f's_and_b32 s{sRot}, s{sRot}, 15'); e(f's_lshl_b32 s{sRot}, s{sRot}, 13')
    e(f's_mov_b32 s{sHead}, s{sHead0}'); e(f's_add_u32 s{sHeadN}, s{sHead0}, 0x1000000')
    e(f's_add_u32 s{sQW}, s{sHead0}, s{sHalf}'); e(f's_add_u32 s{sQW}, s{sQW}, s{sT3}')
    srd = lambda srd, lo: [f's_mov_b32 s{srd}, s{lo}', f's_and_b32 s{srd+1}, s{lo+1}, 0xffff', f's_mov_b32 s{srd+2}, 0x4000000', f's_mov_b32 s{srd+3}, 0x20000']
    for r_, lo in ((sQ, 4), (sK, 6), (sV, 48), (sO, 50)):
        e(f's_mov_b32 s{r_+2}, 0x4000000'); e(f's_mov_b32 s{r_+3}, 0x20000')
    e('s_waitcnt lgkmcnt(0)')
    for r_, lo in ((sQ, 4), (sK, 6), (sV, 48), (sO, 50)):
        e(f's_mov_b32 s{r_}, s{lo}'); e(f's_and_b32 s{r_+1}, s{lo+1}, 0xffff')
    e = B.append if CFG['early'] else A.append
    e('v_and_b32 v2, 31, v0'); e('v_lshrrev_b32 v3, 5, v0')
    e('v_and_b32 v4, 15, v2')
    for t in range(8):
        e(f'v_add_u32 v5, {2*t}, v3'); e('v_xor_b32 v5, v5, v4'); e('v_lshlrev_b32 v5, 4, v5')
        e(f'v_lshl_add_u32 v{KA+t}, v2, 8, v5')
    if CFG['hsw']:
        e('v_bfe_u32 v6, v2, 3, 1'); e('v_xor_b32 v5, v6, v3'); e('v_lshlrev_b32 v6, 8, v2'); e('v_lshl_add_u32 v6, v5, 3, v6'); e(f'v_add_u32 v6, s{sXW}, v6')
    else:
        e('v_lshlrev_b32 v6, 8, v2'); e('v_lshl_add_u32 v6, v3, 3, v6'); e(f'v_add_u32 v6, s{sXW}, v6')
    for c in range(16):
        e(f'v_xor_b32 v5, {c}, v4'); e(f'v_lshl_add_u32 v{WA[c]}, v5, 4, v6')
    e('v_bfe_u32 v4, v0, 2, 2')
    e('v_lshl_add_u32 v5, v3, 2, v4')
    e('v_lshlrev_b32 v5, 8, v5')
    e('v_bfe_u32 v6, v0, 4, 1'); e('v_lshl_add_u32 v5, v6, 5, v5')
    e('v_and_b32 v6, 3, v0'); e('v_lshl_add_u32 v5, v6, 3, v5')
    for db in range(4):
        e(f'v_xor_b32 v6, {db}, v4'); e('v_lshl_add_u32 v6, v6, 6, v5')
        e(f'v_add_u32 v{VB+db}, 0x10000, v6')
    e('v_lshlrev_b32 v7, 4, v0'); e(f'v_add_u32 v{VST}, s{sT3}, v7')
    for pp in range(4): e(f'v_add_u32 v{XR+pp}, s{sXW}, v{QD+pp}')
    e(f's_mov_b32 s{sO4}, {OOB:#x}'); e(f's_mov_b32 s{sO14}, {OOB:#x}')
    e(f's_mov_b32 s{sOprev}, {OOB:#x}'); e(f's_mov_b32 s{sOprev1}, {OOB:#x}')
    e(f's_mov_b32 s{sB}, 0'); e(f's_mov_b32 s{sBad}, 0'); e(f's_mov_b32 s{sBit0}, 1'); e(f's_mov_b32 s{sBit1}, 0')
    e(f's_mov_b32 s{sC}, {fbits(cval):#x}'); e(f's_mov_b32 s{sNegC}, {fbits(-cval):#x}')
    thr = -1.0 if CFG['force_slow'] else 2.0 ** CFG['thr_log2']
    e(f's_mov_b32 s{sThr}, {fbits(thr):#x}')
    return [I(t, 'text') for t in (B if part == 'B' else A)]

def prologue_seq(blk0):
    seq = []
    t0 = dma_tile(0)
    for x in [y for g in dma_q(0, sXW) for y in g] + t0[0] + t0[1]: seq.append(x)
    t0[1][-1].tag = ('k0',)
    for g in dma_q(1, sX2): seq += g
    seq += [salu(f's_add_u32 s{sT}, s{sHead}, 0')] if not CFG['xor'] else [salu(f's_add_u32 s{sT}, s{sHead}, s{sRot}')]
    seq += t0[2] + t0[3]
    for tl in range(1, 6):
        gs = dma_tile(tl)
        if tl == 1: gs[1][-1].tag = ('k1',)
        for g in gs: seq += g
    seq.append(salu(f's_add_u32 s{sQW}, s{sHeadN}, s{sHalf}')); seq.append(salu(f's_add_u32 s{sQW}, s{sQW}, s{sT3}'))
    seq += prologue_text('B')
    for t in range(8):
        seq.append(valu(f'v_add_u32 v{T+t}, s{sXW}, v{KA+t}', [f'v{T+t}'], [f'v{KA+t}']))
        seq.append(valu(f'v_add_u32 v{T+8+t}, s{sX2}, v{KA+t}', [f'v{T+8+t}'], [f'v{KA+t}']))
    seq.append(I('WAITVM', 'waitvm', tag=('k0',))); seq.append(I('s_barrier', 'bar'))
    for t in range(8):
        seq.append(I(f'ds_read_b128 {rr("a",AQ[0]+4*t,4)}, v{T+t}', 'ds', R('a', AQ[0] + 4 * t, 4), [f'v{T+t}']))
        seq.append(kread(t, 0))
    g = -1
    for x in blk0:
        if x.k == 'mfma':
            g += 1
            if g == 24:
                seq.append(I('WAITVM', 'waitvm', tag=(('k1',) if CFG['k1s'] else ('kv', 2 if CFG['bar2'] else 1)))); seq.append(I('s_waitcnt lgkmcnt(0)', 'waitl0')); seq.append(I('s_barrier', 'bar'))
                for gg in dma_tile(6) + ([] if CFG['bar2'] else dma_tile(7)): seq += gg
        if x.prev or x.k in ('waitvm', 'bar', 'vm', 'text') or (x.k in ('salu', 'nop') and not x.prev): continue
        seq.append(x)
        if x.k == 'mfma' and g == 7:
            seq.append(I('WAITVM', 'waitvm', tag=('kv', 0))); seq.append(I('s_barrier', 'bar'))
            for t in range(8):
                a1 = AN if CFG['anq'] else AQ[1]
                seq.append(I(f'ds_read_b128 {rr("a",a1+4*t,4)}, v{T+8+t}', 'ds', R('a', a1 + 4 * t, 4), [f'v{T+8+t}']))
    if CFG['k1s']:
        seq.append(I('WAITVM', 'waitvm', tag=('kv', 2 if CFG['bar2'] else 1))); seq.append(I('s_barrier', 'bar'))
    return seq

def stamp(i):
    return [f's_memtime s[{60+2*i}:{61+2*i}]', 's_waitcnt lgkmcnt(0)'] if CFG['stamps'] else []
def blockend():
    return [salu(f's_add_u32 s{sOprev}, s{sHead}, s{sHalf}'), salu(f's_add_u32 s{sOprev1}, s{sOprev}, 8192'),
            salu(f's_mov_b32 s{sHead}, s{sHeadN}'),
            salu(f's_add_u32 s{sB}, s{sB}, 1'),
            salu(f's_add_u32 s{sHeadN}, s{sHeadN}, 0x1000000'),
            salu(f's_cmp_ge_u32 s{sB}, 3'), salu(f's_cselect_b32 s{sHeadN}, {OOB:#x}, s{sHeadN}'),
            salu(f's_add_u32 s{sQW}, s{sHeadN}, s{sHalf}'), salu(f's_add_u32 s{sQW}, s{sQW}, s{sT3}'),
            salu(f's_add_u32 s{sO4}, s{sOprev}, 4096'), salu(f's_add_u32 s{sO14}, s{sOprev1}, 4096'),
            salu(f's_lshl_b32 s{sT2}, s{sB}, 1'),
            salu(f's_lshl_b32 s{sBit0}, 1, s{sT2}'), salu(f's_lshr_b32 s{sBit1}, s{sBit0}, 1'),
            salu(f's_cmp_lt_u32 s{sB}, 4')]

def slow_text():
    A = []; e = A.append
    e('s_waitcnt vmcnt(0) lgkmcnt(0)'); e('s_barrier')
    e(f's_cmp_eq_u32 s{sBad}, 0'); e('s_cbranch_scc1 L_end')
    G = T; M = MT[0]; N = NMC[0]; Ls = L[0]; s = S[0]; VT = T + 4
    e(f'v_subrev_u32 v{T+8}, s{sW2048}, v{DV}')
    for db in range(4): e(f'v_add_u32 v{VT+db}, s{sW8192}, v{VB+db}')
    e(f'v_mbcnt_lo_u32_b32 v{G}, -1, 0'); e(f'v_mbcnt_hi_u32_b32 v{G}, -1, v{G}')
    e(f'v_lshrrev_b32 v{G+1}, 5, v{G}'); e(f'v_and_b32 v{G}, 31, v{G}'); e(f'v_lshlrev_b32 v{G}, 8, v{G}'); e(f'v_lshl_add_u32 v{G}, v{G+1}, 4, v{G}')
    e(f's_mov_b32 s{sIdx}, 0')
    e('L_slow_loop:')
    e(f's_lshr_b32 s{sT}, s{sBad}, s{sIdx}'); e(f's_and_b32 s{sT}, s{sT}, 1'); e(f's_cmp_eq_u32 s{sT}, 0'); e('s_cbranch_scc1 L_slow_next')
    e(f's_lshr_b32 s{sT}, s{sIdx}, 1'); e(f's_lshl_b32 s{sT}, s{sT}, 24'); e(f's_add_u32 s{sHead}, s{sHead0}, s{sT}')
    e(f's_and_b32 s{sT}, s{sIdx}, 1'); e(f's_lshl_b32 s{sT}, s{sT}, 13'); e(f's_add_u32 s{sOcur}, s{sHead}, s{sHalf}'); e(f's_add_u32 s{sOcur}, s{sOcur}, s{sT}')
    e(f's_lshl_b32 s{sT}, s{sWv}, 14'); e(f's_add_u32 s{sT}, s{sT}, s{sOcur}')
    for t in range(8): e(f'buffer_load_dwordx4 {rr("a",AQ[0]+4*t,4)}, v{G}, s[{sQ}:{sQ+3}], s{sT} offen offset:{32*t}')
    e(f'v_mov_b32 v{M}, 0xff800000')
    def ktile():
        e(f's_lshl_b32 s{sT}, s{sTile}, 13'); e(f's_add_u32 s{sT}, s{sT}, s{sHead}')
        for t in range(8): e(f'buffer_load_dwordx4 {rr("a",AK+4*t,4)}, v{G}, s[{sK}:{sK+3}], s{sT} offen offset:{32*t}')
    def qk():
        e('s_waitcnt vmcnt(0)')
        for t in range(8): e(mfma(s, ('a', AK + 4 * t), ('a', AQ[0] + 4 * t), c0=(t == 0)).t)
        e('s_nop 15')
    e(f's_mov_b32 s{sTile}, 0'); e('L_slow_p1:')
    ktile(); qk()
    for r in range(0, 16, 2): e(f'v_max3_f32 v{M}, v{M}, v{s+r}, v{s+r+1}')
    e(f's_add_u32 s{sTile}, s{sTile}, 1'); e(f's_cmp_lt_u32 s{sTile}, 16'); e('s_cbranch_scc1 L_slow_p1')
    e(f'v_mov_b32 v{N}, v{M}'); e('s_nop 1'); e(f'v_permlane32_swap_b32 v{M}, v{N}'); e('s_nop 1'); e(f'v_max_f32 v{M}, v{M}, v{N}')
    e(f'v_mul_f32 v{N}, s{sNegC}, v{M}'); e(f'v_mov_b32 v{Ls}, 0')
    for r in range(64): e(f'v_mov_b32 v{O[0]+r}, 0')
    e(f's_mov_b32 s{sTile}, 0'); e('L_slow_p2:')
    ktile()
    e(f's_add_u32 m0, s{sW8192}, 65536'); e('s_nop 0')
    for p in range(4): e(f'buffer_load_dwordx4 v{T+8}, s[{sV}:{sV+3}], s{sT} offen offset:{1024*p} lds')
    e(f's_add_u32 m0, s{sW8192}, {65536+4096}'); e(f's_add_u32 s{sT}, s{sT}, 4096')
    for p in range(4): e(f'buffer_load_dwordx4 v{T+8}, s[{sV}:{sV+3}], s{sT} offen offset:{1024*p} lds')
    qk()
    for r in range(16): e(f'v_fma_f32 v{s+r}, v{s+r}, s{sC}, v{N}')
    for r in range(16): e(f'v_exp_f32 v{s+r}, v{s+r}')
    e('s_nop 0')
    for r in range(16): e(f'v_add_f32 v{Ls}, v{Ls}, v{s+r}')
    for k in range(8): e(f'v_cvt_pk_bf16_f32 v{P[0]+k}, v{s+2*k}, v{s+2*k+1}')
    for f in range(8):
        for sec in range(2):
            e(f'ds_read_b64_tr_b16 {rr("a",AV+4*f+2*sec,2)}, v{VT+(f&3)} offset:{(f>>2)*4096+sec*2048}')
    e('s_waitcnt lgkmcnt(0)')
    for f in range(8): e(mfma(O[0] + 16 * (f & 3), ('a', AV + 4 * f), ('v', P[0] + 4 * (f >> 2))).t)
    e(f's_add_u32 s{sTile}, s{sTile}, 1'); e(f's_cmp_lt_u32 s{sTile}, 16'); e('s_cbranch_scc1 L_slow_p2')
    e('s_nop 15')
    e(f'v_mov_b32 v{M}, v{Ls}'); e('s_nop 1'); e(f'v_permlane32_swap_b32 v{Ls}, v{M}'); e('s_nop 1'); e(f'v_add_f32 v{Ls}, v{Ls}, v{M}')
    e(f'v_rcp_f32 v{INV[0]}, v{Ls}'); e('s_nop 1')
    sv = CFG.get('_x')
    seq = []
    global T_save
    for db in range(4): seq += oepi_slow(db)
    e(f's_add_u32 s{sO4}, s{sOcur}, 4096')
    rd, st = oflush(sOcur, sO4, False, ARB)
    seq += [x for g in rd for x in g] + [I('s_waitcnt lgkmcnt(0)', 'wait')] + st
    for x in fix_hazards(seq, 'slow-epi'): e(x.t)
    e('s_waitcnt vmcnt(0)')
    e('L_slow_next:')
    e(f's_add_u32 s{sIdx}, s{sIdx}, 1'); e(f's_cmp_lt_u32 s{sIdx}, 8'); e('s_cbranch_scc1 L_slow_loop')
    return [I(t, 'text') for t in A]
def oepi_slow(db): return oepi(0, db, S[1], False)

def main():
    blk, marks = build_block()
    def filt(l):
        if CFG['nodma']: l = [x for x in l if x.k not in ('vm', 'st')]
        if CFG['novalu'] == 1: l = [x for x in l if x.k not in ('valu', 'trans', 'perm')]
        if CFG['nomfma']: l = [x for x in l if x.k != 'mfma']
        if CFG['nost']: l = [x for x in l if x.k != 'st']
        if CFG['nolds']: l = [x for x in l if x.k not in ('ds', 'dsw')]
        return l
    it0 = blk[:marks[1]]; rest = filt(blk[marks[1]:]);
    blk2, _ = build_block()
    pro = prologue_seq(blk2[:marks[1]])
    it0 = filt(it0)
    blk = it0 + rest
    be = blockend()
    entry = I('L_it1:', 'label')
    full = add_waits(pro + rest + be + it0 + rest + be + it0 + rest + be, 1)
    wm = {}
    for x in full:
        if x.k == 'wait' and x.tag:
            key = (x.tag[0], id(x.tag[1])); wm[key] = min(wm.get(key, 99), x.tag[2])
    def apply(l):
        o = []
        for x in l:
            if x.k == 'waitvm':
                o.append(I(f's_waitcnt vmcnt({min(wm[("vm", id(x))], 63)})', 'wait', prev=x.prev)); continue
            if ('lgkm', id(x)) in wm: o.append(I(f's_waitcnt lgkmcnt({wm[("lgkm", id(x))]})', 'wait', prev=x.prev))
            o.append(x)
        return o
    pro_w = apply(pro); it0_w = apply(it0); rest_w = apply(rest + be)
    body = it0_w + rest_w
    mk = I('', 'label')
    a1 = fix_hazards(pro_w + [mk] + rest_w[:40], 'pro'); pro_f = a1[:a1.index(mk)]; r_a = a1[a1.index(mk) + 1:]
    mk2 = I('', 'label'); mk3 = I('', 'label')
    a2 = fix_hazards(rest_w[-60:] + [mk2] + it0_w + [mk3] + rest_w, 'steady')
    it0_f = a2[a2.index(mk2) + 1:a2.index(mk3)]; rest_f = a2[a2.index(mk3) + 1:]
    chk = fix_hazards(pro_f[-40:] + rest_f[:60], 'entrycheck'); assert len(chk) == 100, len(chk)
    body_f = it0_f + [entry] + rest_f
    tail = [x for x in blk if x.prev and x.k not in ('waitvm',)]
    if CFG['tord']:
        sts = [x for x in tail if x.k == 'st']; oth = [x for x in tail if x.k != 'st']
        arb0 = set(R('a', ARB, 32))
        last0 = max(i for i, x in enumerate(oth) if x.k == 'ds' and (x.d & arb0))
        k = last0 + 1 + CFG['tord']
        tail = oth[:k] + sts[:8] + oth[k:] + sts[8:]
    tail_w = add_waits(tail, 1)
    mark3 = I('', 'label')
    t2 = fix_hazards(body[-60:] + [mark3] + [I('s_waitcnt lgkmcnt(0)', 'wait')] + tail_w, 'tail')
    tail_f = t2[t2.index(mark3) + 1:]
    out = []
    hdr = open('standalone__gqa_softmax__near_ridge.s.ref').read().split('\n')
    name = 'standalone__gqa_softmax__near_ridge_kernel'
    for ln in hdr:
        if ln.startswith('; @launch'): out.append('; @launch grid=(256,1,1) block=(256,1,1) lds=163840')
        elif ln.startswith(';'): out.append(ln)
        else: break
    out += ['.amdgcn_target "amdgcn-amd-amdhsa--gfx950"', '.text', f'.globl {name}', '.p2align 8', f'.type {name},@function', f'{name}:']
    out += stamp(0) + (['s_memrealtime s[80:81]'] if CFG['stamps'] else [])
    out += [x.t for x in prologue_text()]
    out += [x.t for x in pro_f]
    out.append('s_nop 0' if CFG.get('pad') else '.p2align 3' if False else '')
    out += stamp(1)
    out.append('s_branch L_it1')
    out.append('L_loop:')
    out += [x.t for x in body_f]
    if CFG['stamps']:
        out += ['s_cselect_b32 s3, 1, 0', 's_memtime s[84:85]', 's_waitcnt lgkmcnt(0)']
        for b in range(4): out += [f's_cmp_eq_u32 s{sB}, {b+1}', f's_cselect_b32 s{64+2*b}, s84, s{64+2*b}']
        out += ['s_cmp_eq_u32 s3, 1']
    out.append('s_cbranch_scc1 L_loop')
    out += [x.t for x in tail_f]
    if CFG['stamps']:
        out += ['s_waitcnt vmcnt(0)'] + stamp(6) + ['s_memrealtime s[82:83]', 's_load_dwordx2 s[86:87], s[0:1], 32', 's_waitcnt lgkmcnt(0)',
                f's_cmp_lg_u32 s2, {CFG["stampwg"]}', 's_cbranch_scc1 L_nost', f's_cmp_lg_u32 s{sWv}, 0', 's_cbranch_scc1 L_nost',
                's_mov_b32 s88, s86', 's_and_b32 s89, s87, 0xffff', 's_mov_b32 s90, 256', 's_mov_b32 s91, 0x20000', 'v_mov_b32 v1, 0']
        for i, r in enumerate([62, 64, 66, 68, 70, 72]):
            out += [f's_sub_u32 s3, s{r}, s60', 'v_mov_b32 v2, s3', f'buffer_store_dword v2, v1, s[88:91], 0 offen offset:{4*i}']
        out += ['s_sub_u32 s3, s82, s80', 'v_mov_b32 v2, s3', 'buffer_store_dword v2, v1, s[88:91], 0 offen offset:24', 's_waitcnt vmcnt(0)', 'L_nost:']
    if CFG['itst'] >= 0 and CFG['wgst']:
        out += ['s_waitcnt vmcnt(0) lgkmcnt(0)', 's_memtime s[92:93]', 's_waitcnt lgkmcnt(0)']
    elif CFG['itst'] >= 0:
        out += ['s_waitcnt vmcnt(0) lgkmcnt(0)', 's_memtime s[92:93]', 's_load_dwordx2 s[96:97], s[0:1], 32', 's_waitcnt lgkmcnt(0)',
                f's_cmp_lg_u32 s2, {CFG["stampwg"]}', 's_cbranch_scc1 L_nost', f's_cmp_lg_u32 s{sWv}, 0', 's_cbranch_scc1 L_nost',
                's_and_b32 s97, s97, 0xffff', 's_mov_b32 s98, 256', 's_mov_b32 s99, 0x20000', 'v_mov_b32 v1, 0']
        for i in range(16):
            nxt = 62 + 2 * i
            out += [f's_sub_u32 s3, s{nxt}, s{60+2*i}', 'v_mov_b32 v2, s3', f'buffer_store_dword v2, v1, s[96:99], 0 offen offset:{4*i}']
        out += ['s_waitcnt vmcnt(0)', 'L_nost:']
    if CFG['wgst'] and CFG['itst'] >= 0:
        out += ['s_load_dwordx2 s[96:97], s[0:1], 40', 's_waitcnt lgkmcnt(0)', f's_cmp_lg_u32 s{sWv}, 0', 's_cbranch_scc1 L_nost3',
                's_and_b32 s97, s97, 0xffff', 's_mov_b32 s98, 0x10000', 's_mov_b32 s99, 0x20000', 's_lshl_b32 s3, s2, 6', 's_add_u32 s3, s3, 16384', 'v_mov_b32 v1, s3']
        for i in range(16):
            out += [f's_sub_u32 s3, s{62+2*i}, s{60+2*i}', 'v_mov_b32 v2, s3', f'buffer_store_dword v2, v1, s[96:99], 0 offen offset:{4*i}']
        out += ['s_waitcnt vmcnt(0)', 'L_nost3:']
    elif CFG['wgst']:
        out += ['s_load_dwordx2 s[88:89], s[0:1], 40', 's_waitcnt lgkmcnt(0)', f's_cmp_lg_u32 s{sWv}, 0', 's_cbranch_scc1 L_nost2',
                's_and_b32 s89, s89, 0xffff', 's_mov_b32 s90, 0x10000', 's_mov_b32 s91, 0x20000', 's_lshl_b32 s3, s2, 6', 'v_mov_b32 v1, s3']
        vals = ['s80', 's82', ('s72', 's60'), ('s62', 's60'), ('s64', 's60'), ('s66', 's60'), ('s68', 's60'), ('s70', 's60'), ('s72', 's60')]
        for i, r in enumerate(vals):
            out += ([f's_sub_u32 s3, {r[0]}, {r[1]}', 'v_mov_b32 v2, s3'] if isinstance(r, tuple) else [f'v_mov_b32 v2, {r}']) + [f'buffer_store_dword v2, v1, s[88:91], 0 offen offset:{4*i}']
        out += ['s_waitcnt vmcnt(0)', 'L_nost2:']
    out += [x.t for x in slow_text()]
    out += ['L_end:', 's_endpgm', '.section .rodata,"a"', '.p2align 6', f'.amdhsa_kernel {name}',
            '  .amdhsa_next_free_vgpr 512', '  .amdhsa_next_free_sgpr 102', '  .amdhsa_accum_offset 256',
            '  .amdhsa_group_segment_fixed_size 0', '  .amdhsa_kernarg_size 48', '  .amdhsa_user_sgpr_count 2',
            '  .amdhsa_user_sgpr_kernarg_segment_ptr 1', '  .amdhsa_system_sgpr_workgroup_id_x 1', '.end_amdhsa_kernel']
    open(sys.argv[1], 'w').write('\n'.join(o for o in out if o != '') + '\n')
    n = lambda k: sum(1 for x in body_f if x.k == k)
    print('body instrs', len(body_f), {k: n(k) for k in ('mfma', 'valu', 'trans', 'perm', 'ds', 'vm', 'st', 'salu', 'wait', 'nop', 'bar')}, file=sys.stderr)
main()
```

```python
import sys, struct, math
CFG = dict(qsp=0, m0e=0, fx=0, anq=0, k1s=0, wsp=0, e0a=1, e0n=22, e1n=17, bar2=0, hsw=0, pkm=0, early=0, tord=0, stp=0, stv=0, stoff=27, dsp=4, ssp=4, o1s=24, peel=1, rr=1, m16=0, wgst=0, qi1=2, qr1=8, qi0=9, xor=0, ldf=0, stf=0, nomfma=0, nost=0, itst=-1, nodma=0, novalu=0, nolds=0, rot=0, stamps=0, stampwg=0, force_slow=0, thr_log2=30, lgk_window=18, pairmode=1)
for a in sys.argv[2:]:
    k, v = a.split('='); CFG[k] = int(v)

LDF = ['', ' nt', ' sc1', ' sc0 sc1', ' sc0', ' sc0 sc1 nt', ' sc1 nt']
class I:
    __slots__ = ('t', 'k', 'd', 'u', 'tag', 'prev', 'c')
    def __init__(s, t, k, d=(), u=(), tag=None, prev=False, c=()):
        s.t = t; s.k = k; s.d = set(d); s.u = set(u); s.tag = tag; s.prev = prev; s.c = set(c)
def R(p, a, n=1): return [f'{p}{a+i}' for i in range(n)]
def rr(p, a, n): return f'{p}[{a}:{a+n-1}]' if n > 1 else f'{p}{a}'

O = [0, 64]; S = [128, 144]; P = [160, 168]
KA = 176; VB = 192; XR = 196
WA = [184,185,186,187,188,189,190,191,228,229,230,231,252,253,254,255]
T1 = 236
DK0 = 200; DK1 = 201; DV = 202; VST = 203; QD = 232
L = [204, 205]; INV = [206, 207]; NMC = [208, 209]; MT = [210, 211]
T = 212
AQ = [0, 32]; AK = 64; AV = 96; AN = 128; ARB = 160
sQ, sK, sV, sO = 8, 12, 16, 20
sW2048 = 24; sW8192 = 25; sHead = 26; sHeadN = 27; sQN = 28; sOprev = 29; sT = 30; sB = 31
sC = 32; sNegC = 33; sBad = 34; sBit0 = 35; sBit1 = 36; sT2 = 37; sHalf = 38; sOprev1 = 39; sThr = 40
sHead0 = 41; sIdx = 42; sTile = 43; sT3 = 44; sOcur = 45; sWv = 46; sRot = 47; sXW = 52; sQW = 53; sO4 = 54; sX2 = 55; sO14 = 56
OOB = 0x40000000
cval = math.log2(math.e) / math.sqrt(128.0)
def fbits(x): return struct.unpack('<I', struct.pack('<f', x))[0]

def mfma(dst, a, b, c0=False, prev=False):
    ctext = '0' if c0 else rr('v', dst, 16)
    if CFG['m16']:
        c1 = '0' if c0 else rr('v', dst, 4); c2 = '0' if c0 else rr('v', dst + 8, 4)
        return I(f'v_mfma_f32_16x16x32_bf16 {rr("v",dst,4)}, {rr(a[0],a[1],4)}, {rr(b[0],b[1],4)}, {c1}\nv_mfma_f32_16x16x32_bf16 {rr("v",dst+8,4)}, {rr(a[0],a[1],4)}, {rr(b[0],b[1],4)}, {c2}', 'mfma',
             R('v', dst, 16), R(a[0], a[1], 4) + R(b[0], b[1], 4), prev=prev, c=([] if c0 else R('v', dst, 16)))
    return I(f'v_mfma_f32_32x32x16_bf16 {rr("v",dst,16)}, {rr(a[0],a[1],4)}, {rr(b[0],b[1],4)}, {ctext}', 'mfma',
             R('v', dst, 16), R(a[0], a[1], 4) + R(b[0], b[1], 4), prev=prev, c=([] if c0 else R('v', dst, 16)))
def valu(t, d, u, prev=False, k='valu'): return I(t, k, d, u, prev=prev)
def salu(t, prev=False): return I(t, 'salu', prev=prev)

def kaddr(pos): return (KA, pos * 8192)
def vaddr(pos): return (VB, pos * 8192)
def kread(t, pos):
    b, o = kaddr(pos)
    return I(f'ds_read_b128 {rr("a",AK+4*t,4)}, v{b+t} offset:{o}', 'ds', R('a', AK + 4 * t, 4), [f'v{b+t}'])
def vread(f, sec, pos):
    u, db = f >> 2, f & 3
    b, o = vaddr(pos)
    return I(f'ds_read_b64_tr_b16 {rr("a",AV+4*f+2*sec,2)}, v{b+db} offset:{o+u*4096+sec*2048}', 'ds',
             R('a', AV + 4 * f + 2 * sec, 2), [f'v{b+db}'])
def ld(v, srd, off, tag): return I(f'buffer_load_dwordx4 v{v}, s[{srd}:{srd+3}], s{sT} offen offset:{off}{LDF[CFG["ldf"]]} lds', 'vm', [], [f'v{v}'], tag=tag)
def dma_tile(tile):
    nb = tile >= 16; tt = tile % 16; pos = tt % 8
    kb = pos * 8192; vb = 65536 + pos * 8192
    src = sHeadN if nb else sHead
    tag = ('kv', tt)
    if CFG['xor']: pre = [salu(f's_xor_b32 s{sT}, s{sRot}, {tt*8192}'), salu(f's_add_u32 m0, s{sW2048}, {kb}'), salu(f's_add_u32 s{sT}, s{sT}, s{src}')]
    else: pre = [salu(f's_add_u32 m0, s{sW2048}, {kb}'), salu(f's_add_u32 s{sT}, s{src}, {tt*8192}')]
    return [pre + [ld(DK0, sK, 0, tag)], [ld(DK1, sK, 1024, tag)],
            [salu(f's_add_u32 m0, s{sW2048}, {vb}'), I('s_nop 0', 'nop'), ld(DV, sV, 0, tag)], [ld(DV, sV, 1024, tag)]]
def dma_q(qb, ldsbase):
    tag = ('q', qb); g = []
    for p in range(8):
        pre = []
        if p % 4 == 0:
            pre = [salu(f's_add_u32 m0, s{ldsbase}, {(p>>2)*4096}'), salu(f's_add_u32 s{sT}, s{sQW}, {qb*8192+(p>>2)*4096}')]
        g.append(pre + [ld(QD + (p & 3), sQ, (p & 3) * 1024, tag)])
    return g

def dma_q2(qb, ldsbase):
    tag = ('q', qb); g = []
    for p in range(8):
        pre = []
        if p % 2 == 0:
            pre = [salu(f's_add_u32 m0, s{ldsbase}, {(p>>2)*4096}'), salu(f's_add_u32 s{sT}, s{sQW}, {qb*8192+(p>>2)*4096}')]
        g.append(pre + [ld(QD + (p & 3), sQ, (p & 3) * 1024, tag)])
    return g
def lfin(q, bit, prev):
    l, inv, t = L[q], INV[q], MT[q]
    return [valu(f'v_mov_b32 v{t}, v{l}', [f'v{t}'], [f'v{l}'], prev),
            valu(f'v_permlane32_swap_b32 v{l}, v{t}', [f'v{l}', f'v{t}'], [f'v{l}', f'v{t}'], prev, 'perm'),
            valu(f'v_add_f32 v{l}, v{l}, v{t}', [f'v{l}'], [f'v{l}', f'v{t}'], prev),
            valu(f'v_rcp_f32 v{inv}, v{l}', [f'v{inv}'], [f'v{l}'], prev, 'trans'),
            valu(f'v_cmp_nge_f32 vcc, s{sThr}, v{l}', ['vcc'], [f'v{l}'], prev),
            I(f's_cmp_lg_u64 vcc, 0', 'salu', [], ['vcc'], prev=prev), salu(f's_cselect_b32 s{sT2}, s{bit}, 0', prev),
            salu(f's_or_b32 s{sBad}, s{sBad}, s{sT2}', prev)]
def oepi(q, db, tb0, prev):
    o = O[q] + 16 * db; inv = INV[q]; r = []
    for hf in range(2):
        tb = tb0 + 8 * hf
        if CFG['pkm']:
            ip = inv & ~1; sel = 'op_sel_hi:[1,0]' if inv % 2 == 0 else 'op_sel:[0,1] op_sel_hi:[1,1]'
            for i in range(0, 8, 2):
                r.append(valu(f'v_pk_mul_f32 v[{tb+i}:{tb+i+1}], v[{o+8*hf+i}:{o+8*hf+i+1}], v[{ip}:{ip+1}] {sel}', [f'v{tb+i}', f'v{tb+i+1}'], [f'v{o+8*hf+i}', f'v{o+8*hf+i+1}', f'v{inv}'], prev))
            continue
        for i in range(8):
            r.append(valu(f'v_mul_f32 v{tb+i}, v{o+8*hf+i}, v{inv}', [f'v{tb+i}'], [f'v{o+8*hf+i}', f'v{inv}'], prev))
    for hf in range(2):
        tb = tb0 + 8 * hf
        for i in range(4):
            r.append(valu(f'v_cvt_pk_bf16_f32 v{tb+i}, v{tb+2*i}, v{tb+2*i+1}', [f'v{tb+i}'], [f'v{tb+2*i}', f'v{tb+2*i+1}'], prev))
    for hf in range(2):
        tb = tb0 + 8 * hf
        for e_ in range(2):
            c = 4 * db + 2 * hf + e_
            r.append(I(f'ds_write_b64 v{WA[c]}, {rr("v",tb+2*e_,2)}', 'dsw', [], R('v', tb + 2 * e_, 2) + [f'v{WA[c]}'], prev=prev))
    return r
def oepi_all(q, tb0, prev):
    seq = []; pend = []
    for db in range(4):
        ins = oepi(q, db, tb0, prev)
        nm = 4 if CFG['pkm'] else 8
        mul, cvt, wr = ins[:2*nm], ins[2*nm:2*nm+8], ins[2*nm+8:]
        for hf in range(2):
            work = mul[nm*hf:nm*hf+nm] + cvt[4*hf:4*hf+4]
            seq += work[:2] + pend[:1] + work[2:nm] + pend[1:] + work[nm:]
            pend = wr[2*hf:2*hf+2]
    return seq + pend
def oflush(soff, soff4, prev, ab):
    rd = []; st = []
    for p in range(8):
        tb = ab + 4 * p
        if CFG['hsw'] and (p & 2):
            rd.append([I(f'ds_read_b64 {rr("a",tb,2)}, v{XR+(p&3)} offset:{p*1024+8}', 'ds', R('a', tb, 2), [f'v{XR+(p&3)}'], prev=prev),
                       I(f'ds_read_b64 {rr("a",tb+2,2)}, v{XR+(p&3)} offset:{p*1024}', 'ds', R('a', tb + 2, 2), [f'v{XR+(p&3)}'], prev=prev)])
        else:
            rd.append([I(f'ds_read_b128 {rr("a",tb,4)}, v{XR+(p&3)} offset:{p*1024}', 'ds', R('a', tb, 4), [f'v{XR+(p&3)}'], prev=prev)])
        if CFG['stv'] == 1:
            st.append(I(f'buffer_store_dwordx4 {rr("v",T1,4)}, v{VST}, s[{sO}:{sO+3}], s{soff4 if p >= 4 else soff} offen offset:{(p&3)*1024}{LDF[CFG["stf"]]}', 'st', [], R('a', tb, 4) + [f'v{VST}'], prev=prev, tag=('st',)))
        elif CFG['stv'] == 2:
            st.append(I(f'buffer_store_dword v{T1}, v{VST}, s[{sO}:{sO+3}], s{soff4 if p >= 4 else soff} offen offset:{(p&3)*1024}{LDF[CFG["stf"]]}', 'st', [], R('a', tb, 4) + [f'v{VST}'], prev=prev, tag=('st',)))
        elif CFG['stv'] == 3:
            st.append(I(f'buffer_store_dwordx2 {rr("a",tb,2)}, v{VST}, s[{sO}:{sO+3}], s{soff4 if p >= 4 else soff} offen offset:{(p&3)*1024}{LDF[CFG["stf"]]}', 'st', [], R('a', tb, 4) + [f'v{VST}'], prev=prev, tag=('st',)))
        else:
            st.append(I(f'buffer_store_dwordx4 {rr("a",tb,4)}, v{VST}, s[{sO}:{sO+3}], s{soff4 if p >= 4 else soff} offen offset:{(p&3)*1024}{LDF[CFG["stf"]]}', 'st', [], R('a', tb, 4) + [f'v{VST}'], prev=prev, tag=('st',)))
    return rd, st
def maxpro(q):
    s = S[q]; a, b = MT[q], NMC[q]
    m3 = lambda d, x, y, z: valu(f'v_max3_f32 v{d}, v{x}, v{y}, v{z}', [f'v{d}'], [f'v{x}', f'v{y}', f'v{z}'])
    r = [m3(a, s, s+1, s+2), m3(b, s+3, s+4, s+5), m3(a, a, s+6, s+7), m3(b, b, s+8, s+9), m3(a, a, s+10, s+11), m3(b, b, s+12, s+13),
         m3(a, a, s+14, s+15), valu(f'v_max_f32 v{a}, v{a}, v{b}', [f'v{a}'], [f'v{a}', f'v{b}']),
         valu(f'v_mov_b32 v{b}, v{a}', [f'v{b}'], [f'v{a}']),
         valu(f'v_permlane32_swap_b32 v{a}, v{b}', [f'v{a}', f'v{b}'], [f'v{a}', f'v{b}'], k='perm'),
         valu(f'v_max_f32 v{a}, v{a}, v{b}', [f'v{a}'], [f'v{a}', f'v{b}']),
         valu(f'v_mul_f32 v{b}, s{sNegC}, v{a}', [f'v{b}'], [f'v{a}'])]
    return r

def build_block():
    NG = 512
    gaps = [[] for _ in range(NG)]
    slots = [None] * NG
    def put(g, ins, prio):
        prev = g >= NG
        if prev:
            ins.prev = True; g -= NG
        gaps[g].append((prio, len(gaps[g]), ins))
    for j in range(16):
        b = 32 * j
        for t in range(8):
            slots[b + t] = mfma(S[0], ('a', AK + 4 * t), ('a', AQ[0] + 4 * t), c0=(t == 0))
            slots[b + 16 + t] = mfma(S[1], ('a', AK + 4 * t), ('a', (AN if (CFG['anq'] and j <= 7) else AQ[1]) + 4 * t), c0=(t == 0))
        for f in range(8):
            u, db = f >> 2, f & 3
            slots[b + 24 + f] = mfma(O[0] + 16 * db, ('a', AV + 4 * f), ('v', P[0] + 4 * u), c0=(j == 0 and u == 0))
            g = b + 40 + f
            m = mfma(O[1] + 16 * db, ('a', AV + 4 * f), ('v', P[1] + 4 * u), c0=(j == 0 and u == 0), prev=(g >= NG))
            slots[g % NG] = m
        for q in range(2):
            g0 = b + 9 + 16 * q; s = S[q]
            if j == 0:
                for x in maxpro(q): put(g0, x, 1)
            for r in range(16):
                put(g0 + r, valu(f'v_fma_f32 v{s+r}, v{s+r}, s{sC}, v{NMC[q]}', [f'v{s+r}'], [f'v{s+r}', f'v{NMC[q]}']), 2)
                put(g0 + r + 1, valu(f'v_exp_f32 v{s+r}, v{s+r}', [f'v{s+r}'], [f'v{s+r}'], k='trans'), 3)
                if j == 0 and r == 0:
                    put(g0 + r + 2, valu(f'v_mov_b32 v{L[q]}, v{s}', [f'v{L[q]}'], [f'v{s}']), 4)
                else:
                    put(g0 + r + 2, valu(f'v_add_f32 v{L[q]}, v{L[q]}, v{s+r}', [f'v{L[q]}'], [f'v{L[q]}', f'v{s+r}']), 4)
            for k in range(8):
                put(g0 + 3 + 2 * k, valu(f'v_cvt_pk_bf16_f32 v{P[q]+k}, v{s+2*k}, v{s+2*k+1}', [f'v{P[q]+k}'], [f'v{s+2*k}', f'v{s+2*k+1}']), 5)
        for k in range(16): put(b + 9 + k, vread(k >> 1, k & 1, j % 8), 0)
        for t in range(8): put(b + 24 + t, kread(t, (j + 1) % 8), 0)
        need = ('kv', (j + 1) % 16)
        if CFG['itst'] >= 0:
            put(b, I(f's_cmp_lg_u32 s{sB}, {CFG["itst"]}\ns_cbranch_scc1 L_is{j}\ns_memtime s[{60+2*j}:{61+2*j}]\nL_is{j}:', 'text'), -3)
        if CFG['bar2']:
            if j % 2 == 0:
                put(b, I('WAITVM', 'waitvm', tag=('kv', (j + 2) % 16)), -2); put(b, I('s_barrier', 'bar'), -1)
            grp = dma_tile(j + 6)
        else:
            put(b, I('WAITVM', 'waitvm', tag=need), -2); put(b, I('s_barrier', 'bar'), -1)
            grp = dma_tile(j + 7)
        for i, g in enumerate(grp):
            if CFG['m0e'] and i == 2:
                put(b + 2 + CFG['dsp'], g[0], 0); put(b + 1 + CFG['dsp'] * i, g[2], 0); continue
            for x in g: put(b + 1 + CFG['dsp'] * i, x, 0)
    QI1, QR1, QI0 = CFG['qi1'], CFG['qr1'], CFG['qi0']
    for i, g in enumerate(dma_q2(1, sXW) if CFG['qsp'] else dma_q(1, sXW)):
        for x in g: put(32 * QI1 + 17 + 8 * (i % 2) + 32 * (i // 2) if CFG['qsp'] else 32 * QI1 + 17 + 4 * (i % 4) + 32 * (i // 4), x, 0)
    put(32 * QR1 + 1, I('WAITVM', 'waitvm', tag=('q', 1)), -2)
    for t in range(8):
        put(32 * QR1 - (32 if CFG['anq'] else 8) + t, valu(f'v_add_u32 v{T+t}, s{sXW}, v{KA+t}', [f'v{T+t}'], [f'v{KA+t}']), 6)
        put(32 * QR1 + 1 + t, I(f'ds_read_b128 {rr("a",AN+4*t,4)}, v{T+t}', 'ds', R('a', AN + 4 * t, 4), [f'v{T+t}']), 0)
    put(32 * QI0 + 1, I('s_waitcnt lgkmcnt(0)', 'waitl0'), -2)
    for i, g in enumerate(dma_q2(0, sXW) if CFG['qsp'] else dma_q(0, sXW)):
        for x in g: put(32 * QI0 + 17 + 8 * (i % 2) + 32 * (i // 2) if CFG['qsp'] else 32 * QI0 + 17 + 4 * (i % 4) + 32 * (i // 4), x, 0)
    b = 32 * 15
    put(b + 8, I('WAITVM', 'waitvm', tag=('q', 0)), -2)
    for t in range(8):
        put(b + t, valu(f'v_add_u32 v{T+t}, s{sXW}, v{KA+t}', [f'v{T+t}'], [f'v{KA+t}']), 6)
        put(b + 8 + t, I(f'ds_read_b128 {rr("a",AQ[0]+4*t,4)}, v{T+t}', 'ds', R('a', AQ[0] + 4 * t, 4), [f'v{T+t}']), 0)
    sl = [32 * j + g for j in range(2, 7) for g in (0, 2, 3, 4, 6, 7, 8)]
    for r in range(32):
        put(sl[r] if CFG['anq'] else b + 25 + (r // 4) + (r // 4) // 2, valu(f'v_accvgpr_mov_b32 a{AQ[1]+r}, a{AN+r}', [f'a{AQ[1]+r}'], [f'a{AN+r}']), 6)
    b = 32 * 15
    for i, x in enumerate(lfin(0, sBit0, False)): put(b + 27 + (0, 0, 1, 2, 2, 3, 3, 3)[i], x, 7)
    for i, x in enumerate(lfin(1, sBit1, True)): put(NG + 11 + (0, 0, 1, 2, 2, 3, 3, 3)[i], x, 7)
    if CFG['wsp']:
        ins = oepi_all(0, T, True)
        for i, x in enumerate(ins): put(NG + CFG['e0a'] + i * CFG['e0n'] // len(ins), x, 8)
        ins = oepi_all(1, T1, True)
        for i, x in enumerate(ins): put(NG + CFG['o1s'] + i * CFG['e1n'] // len(ins), x, 8.5)
    for db in range(4 if not CFG['wsp'] else 0):
        ins = oepi(0, db, T, True); g0 = NG + 1 + 6 * db - (1 if db else 0); n = 6 if db else 5
        if db == 3: n = 5
        for i, x in enumerate(ins): put(g0 + i * n // len(ins), x, 8)
        ins = oepi(1, db, T1, True); g0 = NG + CFG['o1s'] + 4 * db
        for i, x in enumerate(ins): put(g0 + i * 4 // len(ins), x, 8.5)
    for q, g0 in ((0, NG + 23), (1, NG + 41)):
        rd, st = oflush(sOprev1 if q else sOprev, sO14 if q else sO4, True, ARB + 32 * q)
        for p in range(8):
            for x in rd[p]: put(g0 + (p // 4 if q == 0 else p // 2), x, 7.5)
        for p in range(8): put(max(NG + CFG['stoff'] + CFG['ssp'] * (8 * q + p), g0 + 4 + p), st[p], {0: 9, 1: -0.5, 2: 99}[CFG['stp']])
    out = []; marks = []
    for g in range(NG):
        if g % 32 == 0: marks.append(len(out))
        out.append(slots[g])
        items = sorted(gaps[g], key=lambda e: (e[0], e[1]))
        head = [x for p, _, x in items if p <= 0]
        streams = {}
        last = [x for p, _, x in items if p >= 99]
        for p, _, x in items:
            if 0 < p < 99:
                key = 'sm' if p <= 5 else p
                streams.setdefault(key, []).append(x)
        out += head
        sl = [streams[k] for k in streams]
        if not CFG['rr']:
            for l_ in sl: out += l_
            out += last
            continue
        while any(sl):
            best = None
            for l_ in sl:
                if not l_: continue
                x = l_[0]; st = 0
                for dist, p in enumerate(reversed(out[-4:])):
                    if p.k in ('valu', 'trans', 'perm') and (p.d & (x.u | x.d if x.k == 'perm' else x.u)):
                        lat = 3 if (x.k == 'perm' or p.k in ('trans', 'perm') or 'vcc' in p.d) else 2
                        st = max(st, lat - dist)
                    if p.k == 'salu' and x.k == 'salu' and p.t.startswith('s_cmp'): pass
                if out[-1].k == 'salu' and out[-1].t.startswith('s_cmp_lg_u64') and x.t.startswith('s_cselect'): st = -100
                key = (st, -len(l_))
                if best is None or key < best[0]: best = (key, l_)
            out.append(best[1].pop(0))
        out += last
    return out, marks

def add_waits(seq, passes):
    out = []; ds = []; vm = []
    for ins in seq:
        if ins.k == 'waitvm':
            n = None
            for i in range(len(vm) - 1, -1, -1):
                if vm[i] is not None and vm[i] == ins.tag:
                    n = len(vm) - 1 - i; break
            if n is None: n = 0
            w = I(f's_waitcnt vmcnt({min(n,63)})', 'wait', tag=('vm', ins, n), prev=ins.prev); out.append(w); continue
        if ins.k == 'waitl0':
            out.append(ins); ds = []; continue
        touched = ins.u | ins.d
        need = None
        for i, (pos, dst) in enumerate(ds):
            if dst & touched: need = i
        if need is not None:
            n = len(ds) - 1 - need
            recent = sum(1 for (pos, dst) in ds if pos > len(out) - CFG['lgk_window'])
            n = min(n, recent, 15)
            out.append(I(f's_waitcnt lgkmcnt({n})', 'wait', tag=('lgkm', ins, n), prev=ins.prev))
            ds = ds[len(ds) - n:] if n else []
        out.append(ins)
        if ins.k in ('ds', 'dsw'): ds.append((len(out), ins.d))
        if ins.k in ('vm', 'st'): vm.append(ins.tag)
        if ins.k == 'bar': pass
    return out

def states(x):
    if x.k == 'nop': return int(x.t.split()[1]) + 1
    return 1
def fix_hazards(seq, name):
    out = []; added = 0
    for ins in seq:
        if ins.k in ('label',): out.append(ins); continue
        req = 0; dist = 0
        for p in reversed(out):
            if dist >= 13: break
            if p.k == 'label': continue
            need = 0
            if p.k == 'mfma':
                if ins.k == 'mfma':
                    ab = ins.u
                    if p.d & ab: need = 12
                    elif (p.d & ins.c) and p.d != ins.c: need = 10
                    elif (p.d & ins.d) and not (p.d == ins.d and ins.c): need = 12
                elif ins.k in ('valu', 'trans', 'perm', 'st', 'ds', 'dsw', 'vm'):
                    if p.d & (ins.u | ins.d): need = 12
                    elif ins.k in ('valu', 'trans', 'perm') and (p.c & ins.d): need = 7
            elif p.k in ('valu', 'trans', 'perm'):
                if ins.k == 'mfma' and (p.d & (ins.u | ins.c)): need = 2
                if ins.k == 'perm' and (p.d & ins.u): need = max(need, 2)
                if p.k == 'trans' and ins.k in ('valu', 'perm', 'mfma', 'st', 'dsw') and (p.d & ins.u): need = max(need, 1)
                if p.k == 'perm' and (p.d & ins.u): need = max(need, 1)
                if ins.k == 'salu' and 'vcc' in p.d and 'vcc' in ins.u: need = max(need, 4)
            elif p.k in ('st', 'dsw'):
                if ins.k in ('valu', 'trans', 'perm') and (p.u & ins.d): need = 2
            elif p.k == 'salu' and 'm0' in p.t.split(',')[0] and ins.k == 'vm': need = 1
            req = max(req, need - dist)
            dist += states(p)
        if req > 0:
            out.append(I(f's_nop {req-1}', 'nop', prev=ins.prev)); added += 1
        out.append(ins)
    if added: print(f'; hazard nops added in {name}: {added}', file=sys.stderr)
    return out

def prologue_text(part=None):
    A = []; B = []; e = A.append
    e('s_cmp_ge_u32 s2, 256'); e('s_cbranch_scc1 L_end')
    e('s_load_dwordx4 s[4:7], s[0:1], 0'); e('s_load_dwordx4 s[48:51], s[0:1], 16')
    e('v_lshrrev_b32 v1, 6, v0'); e('v_and_b32 v0, 63, v0'); e('s_nop 0'); e(f'v_readfirstlane_b32 s{sWv}, v1')
    e('v_lshrrev_b32 v4, 4, v0'); e('v_and_b32 v6, 15, v0')
    for pp in range(4):
        e(f'v_add_u32 v7, {4*pp}, v4'); e('v_xor_b32 v7, v7, v6'); e('v_lshlrev_b32 v7, 4, v7')
        e(f'v_lshl_add_u32 v{QD+pp}, v4, 8, v7')
    e(f's_lshl_b32 s{sW2048}, s{sWv}, 11'); e(f's_lshl_b32 s{sW8192}, s{sWv}, 13'); e(f's_add_u32 s{sXW}, s{sW8192}, 131072')
    e(f's_and_b32 s{sX2}, s{sWv}, 1'); e(f's_add_u32 s{sX2}, s{sX2}, 6'); e(f's_lshl_b32 s{sX2}, s{sX2}, 13')
    e(f's_lshr_b32 s{sT}, s{sWv}, 1'); e(f's_lshl_b32 s{sT}, s{sT}, 16'); e(f's_add_u32 s{sX2}, s{sX2}, s{sT}')
    e(f's_lshl_b32 s{sT}, s{sWv}, 3'); e(f's_lshl_b32 s{sT3}, s{sWv}, 14')
    e(f'v_add_u32 v5, s{sT}, v4')
    e('v_and_b32 v7, 15, v5'); e('v_xor_b32 v7, v7, v6'); e('v_lshlrev_b32 v7, 4, v7'); e(f'v_lshl_add_u32 v{DK0}, v5, 8, v7')
    e('v_add_u32 v7, 4, v5'); e('v_and_b32 v7, 15, v7'); e('v_xor_b32 v7, v7, v6'); e('v_lshlrev_b32 v7, 4, v7'); e(f'v_lshl_add_u32 v{DK1}, v5, 8, v7')
    e('v_lshlrev_b32 v7, 2, v4'); e('v_xor_b32 v7, v7, v6'); e('v_lshlrev_b32 v7, 4, v7'); e(f'v_lshl_add_u32 v{DV}, v5, 8, v7')
    if CFG['pairmode'] == 1:
        e('s_lshr_b32 s3, s2, 4'); e('s_lshl_b32 s3, s3, 3'); e(f's_and_b32 s{sT}, s2, 7'); e(f's_add_u32 s3, s3, s{sT}')
        e(f's_lshr_b32 s{sHalf}, s2, 3'); e(f's_and_b32 s{sHalf}, s{sHalf}, 1')
    else:
        e('s_lshr_b32 s3, s2, 1'); e(f's_and_b32 s{sHalf}, s2, 1')
    if CFG['xor']: e(f's_mul_i32 s{sRot}, s{sHalf}, {CFG["xor"]*8192}')
    e(f's_lshl_b32 s{sHalf}, s{sHalf}, 16')
    e(f's_lshl_b32 s{sHead0}, s3, 17')
    if CFG['rot']:
        e(f's_lshr_b32 s{sRot}, s3, {CFG["rot"]-1}'); e(f's_and_b32 s{sRot}, s{sRot}, 15'); e(f's_lshl_b32 s{sRot}, s{sRot}, 13')
    e(f's_mov_b32 s{sHead}, s{sHead0}'); e(f's_add_u32 s{sHeadN}, s{sHead0}, 0x1000000')
    e(f's_add_u32 s{sQW}, s{sHead0}, s{sHalf}'); e(f's_add_u32 s{sQW}, s{sQW}, s{sT3}')
    srd = lambda srd, lo: [f's_mov_b32 s{srd}, s{lo}', f's_and_b32 s{srd+1}, s{lo+1}, 0xffff', f's_mov_b32 s{srd+2}, 0x4000000', f's_mov_b32 s{srd+3}, 0x20000']
    for r_, lo in ((sQ, 4), (sK, 6), (sV, 48), (sO, 50)):
        e(f's_mov_b32 s{r_+2}, 0x4000000'); e(f's_mov_b32 s{r_+3}, 0x20000')
    e('s_waitcnt lgkmcnt(0)')
    for r_, lo in ((sQ, 4), (sK, 6), (sV, 48), (sO, 50)):
        e(f's_mov_b32 s{r_}, s{lo}'); e(f's_and_b32 s{r_+1}, s{lo+1}, 0xffff')
    e = B.append if CFG['early'] else A.append
    e('v_and_b32 v2, 31, v0'); e('v_lshrrev_b32 v3, 5, v0')
    e('v_and_b32 v4, 15, v2')
    for t in range(8):
        e(f'v_add_u32 v5, {2*t}, v3'); e('v_xor_b32 v5, v5, v4'); e('v_lshlrev_b32 v5, 4, v5')
        e(f'v_lshl_add_u32 v{KA+t}, v2, 8, v5')
    if CFG['hsw']:
        e('v_bfe_u32 v6, v2, 3, 1'); e('v_xor_b32 v5, v6, v3'); e('v_lshlrev_b32 v6, 8, v2'); e('v_lshl_add_u32 v6, v5, 3, v6'); e(f'v_add_u32 v6, s{sXW}, v6')
    else:
        e('v_lshlrev_b32 v6, 8, v2'); e('v_lshl_add_u32 v6, v3, 3, v6'); e(f'v_add_u32 v6, s{sXW}, v6')
    for c in range(16):
        e(f'v_xor_b32 v5, {c}, v4'); e(f'v_lshl_add_u32 v{WA[c]}, v5, 4, v6')
    e('v_bfe_u32 v4, v0, 2, 2')
    e('v_lshl_add_u32 v5, v3, 2, v4')
    e('v_lshlrev_b32 v5, 8, v5')
    e('v_bfe_u32 v6, v0, 4, 1'); e('v_lshl_add_u32 v5, v6, 5, v5')
    e('v_and_b32 v6, 3, v0'); e('v_lshl_add_u32 v5, v6, 3, v5')
    for db in range(4):
        e(f'v_xor_b32 v6, {db}, v4'); e('v_lshl_add_u32 v6, v6, 6, v5')
        e(f'v_add_u32 v{VB+db}, 0x10000, v6')
    e('v_lshlrev_b32 v7, 4, v0'); e(f'v_add_u32 v{VST}, s{sT3}, v7')
    for pp in range(4): e(f'v_add_u32 v{XR+pp}, s{sXW}, v{QD+pp}')
    e(f's_mov_b32 s{sO4}, {OOB:#x}'); e(f's_mov_b32 s{sO14}, {OOB:#x}')
    e(f's_mov_b32 s{sOprev}, {OOB:#x}'); e(f's_mov_b32 s{sOprev1}, {OOB:#x}')
    e(f's_mov_b32 s{sB}, 0'); e(f's_mov_b32 s{sBad}, 0'); e(f's_mov_b32 s{sBit0}, 1'); e(f's_mov_b32 s{sBit1}, 0')
    e(f's_mov_b32 s{sC}, {fbits(cval):#x}'); e(f's_mov_b32 s{sNegC}, {fbits(-cval):#x}')
    thr = -1.0 if CFG['force_slow'] else 2.0 ** CFG['thr_log2']
    e(f's_mov_b32 s{sThr}, {fbits(thr):#x}')
    return [I(t, 'text') for t in (B if part == 'B' else A)]

def prologue_seq(blk0):
    seq = []
    t0 = dma_tile(0)
    for x in [y for g in dma_q(0, sXW) for y in g] + t0[0] + t0[1]: seq.append(x)
    t0[1][-1].tag = ('k0',)
    for g in dma_q(1, sX2): seq += g
    seq += [salu(f's_add_u32 s{sT}, s{sHead}, 0')] if not CFG['xor'] else [salu(f's_add_u32 s{sT}, s{sHead}, s{sRot}')]
    seq += t0[2] + t0[3]
    for tl in range(1, 6):
        gs = dma_tile(tl)
        if tl == 1: gs[1][-1].tag = ('k1',)
        for g in gs: seq += g
    seq.append(salu(f's_add_u32 s{sQW}, s{sHeadN}, s{sHalf}')); seq.append(salu(f's_add_u32 s{sQW}, s{sQW}, s{sT3}'))
    seq += prologue_text('B')
    for t in range(8):
        seq.append(valu(f'v_add_u32 v{T+t}, s{sXW}, v{KA+t}', [f'v{T+t}'], [f'v{KA+t}']))
        seq.append(valu(f'v_add_u32 v{T+8+t}, s{sX2}, v{KA+t}', [f'v{T+8+t}'], [f'v{KA+t}']))
    seq.append(I('WAITVM', 'waitvm', tag=('k0',))); seq.append(I('s_barrier', 'bar'))
    for t in range(8):
        seq.append(I(f'ds_read_b128 {rr("a",AQ[0]+4*t,4)}, v{T+t}', 'ds', R('a', AQ[0] + 4 * t, 4), [f'v{T+t}']))
        seq.append(kread(t, 0))
    g = -1
    for x in blk0:
        if x.k == 'mfma':
            g += 1
            if g == 24:
                seq.append(I('WAITVM', 'waitvm', tag=(('k1',) if CFG['k1s'] else ('kv', 2 if CFG['bar2'] else 1)))); seq.append(I('s_waitcnt lgkmcnt(0)', 'waitl0')); seq.append(I('s_barrier', 'bar'))
                for gg in dma_tile(6) + ([] if CFG['bar2'] else dma_tile(7)): seq += gg
        if x.prev or x.k in ('waitvm', 'bar', 'vm', 'text') or (x.k in ('salu', 'nop') and not x.prev): continue
        seq.append(x)
        if x.k == 'mfma' and g == 7:
            seq.append(I('WAITVM', 'waitvm', tag=('kv', 0))); seq.append(I('s_barrier', 'bar'))
            for t in range(8):
                a1 = AN if CFG['anq'] else AQ[1]
                seq.append(I(f'ds_read_b128 {rr("a",a1+4*t,4)}, v{T+8+t}', 'ds', R('a', a1 + 4 * t, 4), [f'v{T+8+t}']))
    if CFG['k1s']:
        seq.append(I('WAITVM', 'waitvm', tag=('kv', 2 if CFG['bar2'] else 1))); seq.append(I('s_barrier', 'bar'))
    return seq

def stamp(i):
    return [f's_memtime s[{60+2*i}:{61+2*i}]', 's_waitcnt lgkmcnt(0)'] if CFG['stamps'] else []
def blockend():
    return [salu(f's_add_u32 s{sOprev}, s{sHead}, s{sHalf}'), salu(f's_add_u32 s{sOprev1}, s{sOprev}, 8192'),
            salu(f's_mov_b32 s{sHead}, s{sHeadN}'),
            salu(f's_add_u32 s{sB}, s{sB}, 1'),
            salu(f's_add_u32 s{sHeadN}, s{sHeadN}, 0x1000000'),
            salu(f's_cmp_ge_u32 s{sB}, 3'), salu(f's_cselect_b32 s{sHeadN}, {OOB:#x}, s{sHeadN}'),
            salu(f's_add_u32 s{sQW}, s{sHeadN}, s{sHalf}'), salu(f's_add_u32 s{sQW}, s{sQW}, s{sT3}'),
            salu(f's_add_u32 s{sO4}, s{sOprev}, 4096'), salu(f's_add_u32 s{sO14}, s{sOprev1}, 4096'),
            salu(f's_lshl_b32 s{sT2}, s{sB}, 1'),
            salu(f's_lshl_b32 s{sBit0}, 1, s{sT2}'), salu(f's_lshr_b32 s{sBit1}, s{sBit0}, 1'),
            salu(f's_cmp_lt_u32 s{sB}, 4')]

def slow_text():
    A = []; e = A.append
    if CFG['fx']:
        e(f's_cmp_eq_u32 s{sBad}, 0'); e('s_cbranch_scc1 L_end'); e('s_waitcnt vmcnt(0) lgkmcnt(0)'); e('s_barrier')
    else:
        e('s_waitcnt vmcnt(0) lgkmcnt(0)'); e('s_barrier')
        e(f's_cmp_eq_u32 s{sBad}, 0'); e('s_cbranch_scc1 L_end')
    G = T; M = MT[0]; N = NMC[0]; Ls = L[0]; s = S[0]; VT = T + 4
    e(f'v_subrev_u32 v{T+8}, s{sW2048}, v{DV}')
    for db in range(4): e(f'v_add_u32 v{VT+db}, s{sW8192}, v{VB+db}')
    e(f'v_mbcnt_lo_u32_b32 v{G}, -1, 0'); e(f'v_mbcnt_hi_u32_b32 v{G}, -1, v{G}')
    e(f'v_lshrrev_b32 v{G+1}, 5, v{G}'); e(f'v_and_b32 v{G}, 31, v{G}'); e(f'v_lshlrev_b32 v{G}, 8, v{G}'); e(f'v_lshl_add_u32 v{G}, v{G+1}, 4, v{G}')
    e(f's_mov_b32 s{sIdx}, 0')
    e('L_slow_loop:')
    e(f's_lshr_b32 s{sT}, s{sBad}, s{sIdx}'); e(f's_and_b32 s{sT}, s{sT}, 1'); e(f's_cmp_eq_u32 s{sT}, 0'); e('s_cbranch_scc1 L_slow_next')
    e(f's_lshr_b32 s{sT}, s{sIdx}, 1'); e(f's_lshl_b32 s{sT}, s{sT}, 24'); e(f's_add_u32 s{sHead}, s{sHead0}, s{sT}')
    e(f's_and_b32 s{sT}, s{sIdx}, 1'); e(f's_lshl_b32 s{sT}, s{sT}, 13'); e(f's_add_u32 s{sOcur}, s{sHead}, s{sHalf}'); e(f's_add_u32 s{sOcur}, s{sOcur}, s{sT}')
    e(f's_lshl_b32 s{sT}, s{sWv}, 14'); e(f's_add_u32 s{sT}, s{sT}, s{sOcur}')
    for t in range(8): e(f'buffer_load_dwordx4 {rr("a",AQ[0]+4*t,4)}, v{G}, s[{sQ}:{sQ+3}], s{sT} offen offset:{32*t}')
    e(f'v_mov_b32 v{M}, 0xff800000')
    def ktile():
        e(f's_lshl_b32 s{sT}, s{sTile}, 13'); e(f's_add_u32 s{sT}, s{sT}, s{sHead}')
        for t in range(8): e(f'buffer_load_dwordx4 {rr("a",AK+4*t,4)}, v{G}, s[{sK}:{sK+3}], s{sT} offen offset:{32*t}')
    def qk():
        e('s_waitcnt vmcnt(0)')
        for t in range(8): e(mfma(s, ('a', AK + 4 * t), ('a', AQ[0] + 4 * t), c0=(t == 0)).t)
        e('s_nop 15')
    e(f's_mov_b32 s{sTile}, 0'); e('L_slow_p1:')
    ktile(); qk()
    for r in range(0, 16, 2): e(f'v_max3_f32 v{M}, v{M}, v{s+r}, v{s+r+1}')
    e(f's_add_u32 s{sTile}, s{sTile}, 1'); e(f's_cmp_lt_u32 s{sTile}, 16'); e('s_cbranch_scc1 L_slow_p1')
    e(f'v_mov_b32 v{N}, v{M}'); e('s_nop 1'); e(f'v_permlane32_swap_b32 v{M}, v{N}'); e('s_nop 1'); e(f'v_max_f32 v{M}, v{M}, v{N}')
    e(f'v_mul_f32 v{N}, s{sNegC}, v{M}'); e(f'v_mov_b32 v{Ls}, 0')
    for r in range(64): e(f'v_mov_b32 v{O[0]+r}, 0')
    e(f's_mov_b32 s{sTile}, 0'); e('L_slow_p2:')
    ktile()
    e(f's_add_u32 m0, s{sW8192}, 65536'); e('s_nop 0')
    for p in range(4): e(f'buffer_load_dwordx4 v{T+8}, s[{sV}:{sV+3}], s{sT} offen offset:{1024*p} lds')
    e(f's_add_u32 m0, s{sW8192}, {65536+4096}'); e(f's_add_u32 s{sT}, s{sT}, 4096')
    for p in range(4): e(f'buffer_load_dwordx4 v{T+8}, s[{sV}:{sV+3}], s{sT} offen offset:{1024*p} lds')
    qk()
    for r in range(16): e(f'v_fma_f32 v{s+r}, v{s+r}, s{sC}, v{N}')
    for r in range(16): e(f'v_exp_f32 v{s+r}, v{s+r}')
    e('s_nop 0')
    for r in range(16): e(f'v_add_f32 v{Ls}, v{Ls}, v{s+r}')
    for k in range(8): e(f'v_cvt_pk_bf16_f32 v{P[0]+k}, v{s+2*k}, v{s+2*k+1}')
    for f in range(8):
        for sec in range(2):
            e(f'ds_read_b64_tr_b16 {rr("a",AV+4*f+2*sec,2)}, v{VT+(f&3)} offset:{(f>>2)*4096+sec*2048}')
    e('s_waitcnt lgkmcnt(0)')
    for f in range(8): e(mfma(O[0] + 16 * (f & 3), ('a', AV + 4 * f), ('v', P[0] + 4 * (f >> 2))).t)
    e(f's_add_u32 s{sTile}, s{sTile}, 1'); e(f's_cmp_lt_u32 s{sTile}, 16'); e('s_cbranch_scc1 L_slow_p2')
    e('s_nop 15')
    e(f'v_mov_b32 v{M}, v{Ls}'); e('s_nop 1'); e(f'v_permlane32_swap_b32 v{Ls}, v{M}'); e('s_nop 1'); e(f'v_add_f32 v{Ls}, v{Ls}, v{M}')
    e(f'v_rcp_f32 v{INV[0]}, v{Ls}'); e('s_nop 1')
    sv = CFG.get('_x')
    seq = []
    global T_save
    for db in range(4): seq += oepi_slow(db)
    e(f's_add_u32 s{sO4}, s{sOcur}, 4096')
    rd, st = oflush(sOcur, sO4, False, ARB)
    seq += [x for g in rd for x in g] + [I('s_waitcnt lgkmcnt(0)', 'wait')] + st
    for x in fix_hazards(seq, 'slow-epi'): e(x.t)
    e('s_waitcnt vmcnt(0)')
    e('L_slow_next:')
    e(f's_add_u32 s{sIdx}, s{sIdx}, 1'); e(f's_cmp_lt_u32 s{sIdx}, 8'); e('s_cbranch_scc1 L_slow_loop')
    return [I(t, 'text') for t in A]
def oepi_slow(db): return oepi(0, db, S[1], False)

def main():
    blk, marks = build_block()
    def filt(l):
        if CFG['nodma']: l = [x for x in l if x.k not in ('vm', 'st')]
        if CFG['novalu'] == 1: l = [x for x in l if x.k not in ('valu', 'trans', 'perm')]
        if CFG['nomfma']: l = [x for x in l if x.k != 'mfma']
        if CFG['nost']: l = [x for x in l if x.k != 'st']
        if CFG['nolds']: l = [x for x in l if x.k not in ('ds', 'dsw')]
        return l
    it0 = blk[:marks[1]]; rest = filt(blk[marks[1]:]);
    blk2, _ = build_block()
    pro = prologue_seq(blk2[:marks[1]])
    it0 = filt(it0)
    blk = it0 + rest
    be = blockend()
    entry = I('L_it1:', 'label')
    full = add_waits(pro + rest + be + it0 + rest + be + it0 + rest + be, 1)
    wm = {}
    for x in full:
        if x.k == 'wait' and x.tag:
            key = (x.tag[0], id(x.tag[1])); wm[key] = min(wm.get(key, 99), x.tag[2])
    def apply(l):
        o = []
        for x in l:
            if x.k == 'waitvm':
                o.append(I(f's_waitcnt vmcnt({min(wm[("vm", id(x))], 63)})', 'wait', prev=x.prev)); continue
            if ('lgkm', id(x)) in wm: o.append(I(f's_waitcnt lgkmcnt({wm[("lgkm", id(x))]})', 'wait', prev=x.prev))
            o.append(x)
        return o
    pro_w = apply(pro); it0_w = apply(it0); rest_w = apply(rest + be)
    body = it0_w + rest_w
    mk = I('', 'label')
    a1 = fix_hazards(pro_w + [mk] + rest_w[:40], 'pro'); pro_f = a1[:a1.index(mk)]; r_a = a1[a1.index(mk) + 1:]
    mk2 = I('', 'label'); mk3 = I('', 'label')
    a2 = fix_hazards(rest_w[-60:] + [mk2] + it0_w + [mk3] + rest_w, 'steady')
    it0_f = a2[a2.index(mk2) + 1:a2.index(mk3)]; rest_f = a2[a2.index(mk3) + 1:]
    chk = fix_hazards(pro_f[-40:] + rest_f[:60], 'entrycheck'); assert len(chk) == 100, len(chk)
    body_f = it0_f + [entry] + rest_f
    tail = [x for x in blk if x.prev and x.k not in ('waitvm',)]
    if CFG['tord']:
        sts = [x for x in tail if x.k == 'st']; oth = [x for x in tail if x.k != 'st']
        arb0 = set(R('a', ARB, 32))
        last0 = max(i for i, x in enumerate(oth) if x.k == 'ds' and (x.d & arb0))
        k = last0 + 1 + CFG['tord']
        tail = oth[:k] + sts[:8] + oth[k:] + sts[8:]
    tail_w = add_waits(tail, 1)
    mark3 = I('', 'label')
    t2 = fix_hazards(body[-60:] + [mark3] + [I('s_waitcnt lgkmcnt(0)', 'wait')] + tail_w, 'tail')
    tail_f = t2[t2.index(mark3) + 1:]
    out = []
    hdr = open('standalone__gqa_softmax__near_ridge.s.ref').read().split('\n')
    name = 'standalone__gqa_softmax__near_ridge_kernel'
    for ln in hdr:
        if ln.startswith('; @launch'): out.append('; @launch grid=(256,1,1) block=(256,1,1) lds=163840')
        elif ln.startswith(';'): out.append(ln)
        else: break
    out += ['.amdgcn_target "amdgcn-amd-amdhsa--gfx950"', '.text', f'.globl {name}', '.p2align 8', f'.type {name},@function', f'{name}:']
    out += stamp(0) + (['s_memrealtime s[80:81]'] if CFG['stamps'] else [])
    out += [x.t for x in prologue_text()]
    out += [x.t for x in pro_f]
    out.append('s_nop 0' if CFG.get('pad') else '.p2align 3' if False else '')
    out += stamp(1)
    out.append('s_branch L_it1')
    out.append('L_loop:')
    out += [x.t for x in body_f]
    if CFG['stamps']:
        out += ['s_cselect_b32 s3, 1, 0', 's_memtime s[84:85]', 's_waitcnt lgkmcnt(0)']
        for b in range(4): out += [f's_cmp_eq_u32 s{sB}, {b+1}', f's_cselect_b32 s{64+2*b}, s84, s{64+2*b}']
        out += ['s_cmp_eq_u32 s3, 1']
    out.append('s_cbranch_scc1 L_loop')
    out += [x.t for x in tail_f]
    if CFG['stamps']:
        out += ['s_waitcnt vmcnt(0)'] + stamp(6) + ['s_memrealtime s[82:83]', 's_load_dwordx2 s[86:87], s[0:1], 32', 's_waitcnt lgkmcnt(0)',
                f's_cmp_lg_u32 s2, {CFG["stampwg"]}', 's_cbranch_scc1 L_nost', f's_cmp_lg_u32 s{sWv}, 0', 's_cbranch_scc1 L_nost',
                's_mov_b32 s88, s86', 's_and_b32 s89, s87, 0xffff', 's_mov_b32 s90, 256', 's_mov_b32 s91, 0x20000', 'v_mov_b32 v1, 0']
        for i, r in enumerate([62, 64, 66, 68, 70, 72]):
            out += [f's_sub_u32 s3, s{r}, s60', 'v_mov_b32 v2, s3', f'buffer_store_dword v2, v1, s[88:91], 0 offen offset:{4*i}']
        out += ['s_sub_u32 s3, s82, s80', 'v_mov_b32 v2, s3', 'buffer_store_dword v2, v1, s[88:91], 0 offen offset:24', 's_waitcnt vmcnt(0)', 'L_nost:']
    if CFG['itst'] >= 0 and CFG['wgst']:
        out += ['s_waitcnt vmcnt(0) lgkmcnt(0)', 's_memtime s[92:93]', 's_waitcnt lgkmcnt(0)']
    elif CFG['itst'] >= 0:
        out += ['s_waitcnt vmcnt(0) lgkmcnt(0)', 's_memtime s[92:93]', 's_load_dwordx2 s[96:97], s[0:1], 32', 's_waitcnt lgkmcnt(0)',
                f's_cmp_lg_u32 s2, {CFG["stampwg"]}', 's_cbranch_scc1 L_nost', f's_cmp_lg_u32 s{sWv}, 0', 's_cbranch_scc1 L_nost',
                's_and_b32 s97, s97, 0xffff', 's_mov_b32 s98, 256', 's_mov_b32 s99, 0x20000', 'v_mov_b32 v1, 0']
        for i in range(16):
            nxt = 62 + 2 * i
            out += [f's_sub_u32 s3, s{nxt}, s{60+2*i}', 'v_mov_b32 v2, s3', f'buffer_store_dword v2, v1, s[96:99], 0 offen offset:{4*i}']
        out += ['s_waitcnt vmcnt(0)', 'L_nost:']
    if CFG['wgst'] and CFG['itst'] >= 0:
        out += ['s_load_dwordx2 s[96:97], s[0:1], 40', 's_waitcnt lgkmcnt(0)', f's_cmp_lg_u32 s{sWv}, 0', 's_cbranch_scc1 L_nost3',
                's_and_b32 s97, s97, 0xffff', 's_mov_b32 s98, 0x10000', 's_mov_b32 s99, 0x20000', 's_lshl_b32 s3, s2, 6', 's_add_u32 s3, s3, 16384', 'v_mov_b32 v1, s3']
        for i in range(16):
            out += [f's_sub_u32 s3, s{62+2*i}, s{60+2*i}', 'v_mov_b32 v2, s3', f'buffer_store_dword v2, v1, s[96:99], 0 offen offset:{4*i}']
        out += ['s_waitcnt vmcnt(0)', 'L_nost3:']
    elif CFG['wgst']:
        out += ['s_load_dwordx2 s[88:89], s[0:1], 40', 's_waitcnt lgkmcnt(0)', f's_cmp_lg_u32 s{sWv}, 0', 's_cbranch_scc1 L_nost2',
                's_and_b32 s89, s89, 0xffff', 's_mov_b32 s90, 0x10000', 's_mov_b32 s91, 0x20000', 's_lshl_b32 s3, s2, 6', 'v_mov_b32 v1, s3']
        vals = ['s80', 's82', ('s72', 's60'), ('s62', 's60'), ('s64', 's60'), ('s66', 's60'), ('s68', 's60'), ('s70', 's60'), ('s72', 's60')]
        for i, r in enumerate(vals):
            out += ([f's_sub_u32 s3, {r[0]}, {r[1]}', 'v_mov_b32 v2, s3'] if isinstance(r, tuple) else [f'v_mov_b32 v2, {r}']) + [f'buffer_store_dword v2, v1, s[88:91], 0 offen offset:{4*i}']
        out += ['s_waitcnt vmcnt(0)', 'L_nost2:']
    out += [x.t for x in slow_text()]
    out += ['L_end:', 's_endpgm', '.section .rodata,"a"', '.p2align 6', f'.amdhsa_kernel {name}',
            '  .amdhsa_next_free_vgpr 512', '  .amdhsa_next_free_sgpr 102', '  .amdhsa_accum_offset 256',
            '  .amdhsa_group_segment_fixed_size 0', '  .amdhsa_kernarg_size 48', '  .amdhsa_user_sgpr_count 2',
            '  .amdhsa_user_sgpr_kernarg_segment_ptr 1', '  .amdhsa_system_sgpr_workgroup_id_x 1', '.end_amdhsa_kernel']
    open(sys.argv[1], 'w').write('\n'.join(o for o in out if o != '') + '\n')
    n = lambda k: sum(1 for x in body_f if x.k == k)
    print('body instrs', len(body_f), {k: n(k) for k in ('mfma', 'valu', 'trans', 'perm', 'ds', 'vm', 'st', 'salu', 'wait', 'nop', 'bar')}, file=sys.stderr)
main()
```

```python
import sys, struct, math
CFG = dict(stt=-1, barg=0, barl=0, qsp=0, m0e=0, fx=0, anq=0, k1s=0, wsp=0, e0a=1, e0n=22, e1n=17, bar2=0, hsw=0, pkm=0, early=0, tord=0, stp=0, stv=0, stoff=27, dsp=4, ssp=4, o1s=24, peel=1, rr=1, m16=0, wgst=0, qi1=2, qr1=8, qi0=9, xor=0, ldf=0, stf=0, nomfma=0, nost=0, itst=-1, nodma=0, novalu=0, nolds=0, rot=0, stamps=0, stampwg=0, force_slow=0, thr_log2=30, lgk_window=18, pairmode=1)
for a in sys.argv[2:]:
    k, v = a.split('='); CFG[k] = int(v)

LDF = ['', ' nt', ' sc1', ' sc0 sc1', ' sc0', ' sc0 sc1 nt', ' sc1 nt']
class I:
    __slots__ = ('t', 'k', 'd', 'u', 'tag', 'prev', 'c')
    def __init__(s, t, k, d=(), u=(), tag=None, prev=False, c=()):
        s.t = t; s.k = k; s.d = set(d); s.u = set(u); s.tag = tag; s.prev = prev; s.c = set(c)
def R(p, a, n=1): return [f'{p}{a+i}' for i in range(n)]
def rr(p, a, n): return f'{p}[{a}:{a+n-1}]' if n > 1 else f'{p}{a}'

O = [0, 64]; S = [128, 144]; P = [160, 168]
KA = 176; VB = 192; XR = 196
WA = [184,185,186,187,188,189,190,191,228,229,230,231,252,253,254,255]
T1 = 236
DK0 = 200; DK1 = 201; DV = 202; VST = 203; QD = 232
L = [204, 205]; INV = [206, 207]; NMC = [208, 209]; MT = [210, 211]
T = 212
AQ = [0, 32]; AK = 64; AV = 96; AN = 128; ARB = 160
sQ, sK, sV, sO = 8, 12, 16, 20
sW2048 = 24; sW8192 = 25; sHead = 26; sHeadN = 27; sQN = 28; sOprev = 29; sT = 30; sB = 31
sC = 32; sNegC = 33; sBad = 34; sBit0 = 35; sBit1 = 36; sT2 = 37; sHalf = 38; sOprev1 = 39; sThr = 40
sHead0 = 41; sIdx = 42; sTile = 43; sT3 = 44; sOcur = 45; sWv = 46; sRot = 47; sXW = 52; sQW = 53; sO4 = 54; sX2 = 55; sO14 = 56
OOB = 0x40000000
cval = math.log2(math.e) / math.sqrt(128.0)
def fbits(x): return struct.unpack('<I', struct.pack('<f', x))[0]

def mfma(dst, a, b, c0=False, prev=False):
    ctext = '0' if c0 else rr('v', dst, 16)
    if CFG['m16']:
        c1 = '0' if c0 else rr('v', dst, 4); c2 = '0' if c0 else rr('v', dst + 8, 4)
        return I(f'v_mfma_f32_16x16x32_bf16 {rr("v",dst,4)}, {rr(a[0],a[1],4)}, {rr(b[0],b[1],4)}, {c1}\nv_mfma_f32_16x16x32_bf16 {rr("v",dst+8,4)}, {rr(a[0],a[1],4)}, {rr(b[0],b[1],4)}, {c2}', 'mfma',
             R('v', dst, 16), R(a[0], a[1], 4) + R(b[0], b[1], 4), prev=prev, c=([] if c0 else R('v', dst, 16)))
    return I(f'v_mfma_f32_32x32x16_bf16 {rr("v",dst,16)}, {rr(a[0],a[1],4)}, {rr(b[0],b[1],4)}, {ctext}', 'mfma',
             R('v', dst, 16), R(a[0], a[1], 4) + R(b[0], b[1], 4), prev=prev, c=([] if c0 else R('v', dst, 16)))
def valu(t, d, u, prev=False, k='valu'): return I(t, k, d, u, prev=prev)
def salu(t, prev=False): return I(t, 'salu', prev=prev)

def kaddr(pos): return (KA, pos * 8192)
def vaddr(pos): return (VB, pos * 8192)
def kread(t, pos):
    b, o = kaddr(pos)
    return I(f'ds_read_b128 {rr("a",AK+4*t,4)}, v{b+t} offset:{o}', 'ds', R('a', AK + 4 * t, 4), [f'v{b+t}'])
def vread(f, sec, pos):
    u, db = f >> 2, f & 3
    b, o = vaddr(pos)
    return I(f'ds_read_b64_tr_b16 {rr("a",AV+4*f+2*sec,2)}, v{b+db} offset:{o+u*4096+sec*2048}', 'ds',
             R('a', AV + 4 * f + 2 * sec, 2), [f'v{b+db}'])
def ld(v, srd, off, tag): return I(f'buffer_load_dwordx4 v{v}, s[{srd}:{srd+3}], s{sT} offen offset:{off}{LDF[CFG["ldf"]]} lds', 'vm', [], [f'v{v}'], tag=tag)
def dma_tile(tile):
    nb = tile >= 16; tt = tile % 16; pos = tt % 8
    kb = pos * 8192; vb = 65536 + pos * 8192
    src = sHeadN if nb else sHead
    tag = ('kv', tt)
    if CFG['xor']: pre = [salu(f's_xor_b32 s{sT}, s{sRot}, {tt*8192}'), salu(f's_add_u32 m0, s{sW2048}, {kb}'), salu(f's_add_u32 s{sT}, s{sT}, s{src}')]
    else: pre = [salu(f's_add_u32 m0, s{sW2048}, {kb}'), salu(f's_add_u32 s{sT}, s{src}, {tt*8192}')]
    return [pre + [ld(DK0, sK, 0, tag)], [ld(DK1, sK, 1024, tag)],
            [salu(f's_add_u32 m0, s{sW2048}, {vb}'), I('s_nop 0', 'nop'), ld(DV, sV, 0, tag)], [ld(DV, sV, 1024, tag)]]
def dma_q(qb, ldsbase):
    tag = ('q', qb); g = []
    for p in range(8):
        pre = []
        if p % 4 == 0:
            pre = [salu(f's_add_u32 m0, s{ldsbase}, {(p>>2)*4096}'), salu(f's_add_u32 s{sT}, s{sQW}, {qb*8192+(p>>2)*4096}')]
        g.append(pre + [ld(QD + (p & 3), sQ, (p & 3) * 1024, tag)])
    return g

def dma_q2(qb, ldsbase):
    tag = ('q', qb); g = []
    for p in range(8):
        pre = []
        if p % 2 == 0:
            pre = [salu(f's_add_u32 m0, s{ldsbase}, {(p>>2)*4096}'), salu(f's_add_u32 s{sT}, s{sQW}, {qb*8192+(p>>2)*4096}')]
        g.append(pre + [ld(QD + (p & 3), sQ, (p & 3) * 1024, tag)])
    return g
def lfin(q, bit, prev):
    l, inv, t = L[q], INV[q], MT[q]
    return [valu(f'v_mov_b32 v{t}, v{l}', [f'v{t}'], [f'v{l}'], prev),
            valu(f'v_permlane32_swap_b32 v{l}, v{t}', [f'v{l}', f'v{t}'], [f'v{l}', f'v{t}'], prev, 'perm'),
            valu(f'v_add_f32 v{l}, v{l}, v{t}', [f'v{l}'], [f'v{l}', f'v{t}'], prev),
            valu(f'v_rcp_f32 v{inv}, v{l}', [f'v{inv}'], [f'v{l}'], prev, 'trans'),
            valu(f'v_cmp_nge_f32 vcc, s{sThr}, v{l}', ['vcc'], [f'v{l}'], prev),
            I(f's_cmp_lg_u64 vcc, 0', 'salu', [], ['vcc'], prev=prev), salu(f's_cselect_b32 s{sT2}, s{bit}, 0', prev),
            salu(f's_or_b32 s{sBad}, s{sBad}, s{sT2}', prev)]
def oepi(q, db, tb0, prev):
    o = O[q] + 16 * db; inv = INV[q]; r = []
    for hf in range(2):
        tb = tb0 + 8 * hf
        if CFG['pkm']:
            ip = inv & ~1; sel = 'op_sel_hi:[1,0]' if inv % 2 == 0 else 'op_sel:[0,1] op_sel_hi:[1,1]'
            for i in range(0, 8, 2):
                r.append(valu(f'v_pk_mul_f32 v[{tb+i}:{tb+i+1}], v[{o+8*hf+i}:{o+8*hf+i+1}], v[{ip}:{ip+1}] {sel}', [f'v{tb+i}', f'v{tb+i+1}'], [f'v{o+8*hf+i}', f'v{o+8*hf+i+1}', f'v{inv}'], prev))
            continue
        for i in range(8):
            r.append(valu(f'v_mul_f32 v{tb+i}, v{o+8*hf+i}, v{inv}', [f'v{tb+i}'], [f'v{o+8*hf+i}', f'v{inv}'], prev))
    for hf in range(2):
        tb = tb0 + 8 * hf
        for i in range(4):
            r.append(valu(f'v_cvt_pk_bf16_f32 v{tb+i}, v{tb+2*i}, v{tb+2*i+1}', [f'v{tb+i}'], [f'v{tb+2*i}', f'v{tb+2*i+1}'], prev))
    for hf in range(2):
        tb = tb0 + 8 * hf
        for e_ in range(2):
            c = 4 * db + 2 * hf + e_
            r.append(I(f'ds_write_b64 v{WA[c]}, {rr("v",tb+2*e_,2)}', 'dsw', [], R('v', tb + 2 * e_, 2) + [f'v{WA[c]}'], prev=prev))
    return r
def oepi_all(q, tb0, prev):
    seq = []; pend = []
    for db in range(4):
        ins = oepi(q, db, tb0, prev)
        nm = 4 if CFG['pkm'] else 8
        mul, cvt, wr = ins[:2*nm], ins[2*nm:2*nm+8], ins[2*nm+8:]
        for hf in range(2):
            work = mul[nm*hf:nm*hf+nm] + cvt[4*hf:4*hf+4]
            seq += work[:2] + pend[:1] + work[2:nm] + pend[1:] + work[nm:]
            pend = wr[2*hf:2*hf+2]
    return seq + pend
def oflush(soff, soff4, prev, ab):
    rd = []; st = []
    for p in range(8):
        tb = ab + 4 * p
        if CFG['hsw'] and (p & 2):
            rd.append([I(f'ds_read_b64 {rr("a",tb,2)}, v{XR+(p&3)} offset:{p*1024+8}', 'ds', R('a', tb, 2), [f'v{XR+(p&3)}'], prev=prev),
                       I(f'ds_read_b64 {rr("a",tb+2,2)}, v{XR+(p&3)} offset:{p*1024}', 'ds', R('a', tb + 2, 2), [f'v{XR+(p&3)}'], prev=prev)])
        else:
            rd.append([I(f'ds_read_b128 {rr("a",tb,4)}, v{XR+(p&3)} offset:{p*1024}', 'ds', R('a', tb, 4), [f'v{XR+(p&3)}'], prev=prev)])
        if CFG['stv'] == 1:
            st.append(I(f'buffer_store_dwordx4 {rr("v",T1,4)}, v{VST}, s[{sO}:{sO+3}], s{soff4 if p >= 4 else soff} offen offset:{(p&3)*1024}{LDF[CFG["stf"]]}', 'st', [], R('a', tb, 4) + [f'v{VST}'], prev=prev, tag=('st',)))
        elif CFG['stv'] == 2:
            st.append(I(f'buffer_store_dword v{T1}, v{VST}, s[{sO}:{sO+3}], s{soff4 if p >= 4 else soff} offen offset:{(p&3)*1024}{LDF[CFG["stf"]]}', 'st', [], R('a', tb, 4) + [f'v{VST}'], prev=prev, tag=('st',)))
        elif CFG['stv'] == 3:
            st.append(I(f'buffer_store_dwordx2 {rr("a",tb,2)}, v{VST}, s[{sO}:{sO+3}], s{soff4 if p >= 4 else soff} offen offset:{(p&3)*1024}{LDF[CFG["stf"]]}', 'st', [], R('a', tb, 4) + [f'v{VST}'], prev=prev, tag=('st',)))
        else:
            st.append(I(f'buffer_store_dwordx4 {rr("a",tb,4)}, v{VST}, s[{sO}:{sO+3}], s{soff4 if p >= 4 else soff} offen offset:{(p&3)*1024}{LDF[CFG["stf"]]}', 'st', [], R('a', tb, 4) + [f'v{VST}'], prev=prev, tag=('st',)))
    return rd, st
def maxpro(q):
    s = S[q]; a, b = MT[q], NMC[q]
    m3 = lambda d, x, y, z: valu(f'v_max3_f32 v{d}, v{x}, v{y}, v{z}', [f'v{d}'], [f'v{x}', f'v{y}', f'v{z}'])
    r = [m3(a, s, s+1, s+2), m3(b, s+3, s+4, s+5), m3(a, a, s+6, s+7), m3(b, b, s+8, s+9), m3(a, a, s+10, s+11), m3(b, b, s+12, s+13),
         m3(a, a, s+14, s+15), valu(f'v_max_f32 v{a}, v{a}, v{b}', [f'v{a}'], [f'v{a}', f'v{b}']),
         valu(f'v_mov_b32 v{b}, v{a}', [f'v{b}'], [f'v{a}']),
         valu(f'v_permlane32_swap_b32 v{a}, v{b}', [f'v{a}', f'v{b}'], [f'v{a}', f'v{b}'], k='perm'),
         valu(f'v_max_f32 v{a}, v{a}, v{b}', [f'v{a}'], [f'v{a}', f'v{b}']),
         valu(f'v_mul_f32 v{b}, s{sNegC}, v{a}', [f'v{b}'], [f'v{a}'])]
    return r

def build_block():
    NG = 512
    gaps = [[] for _ in range(NG)]
    slots = [None] * NG
    def put(g, ins, prio):
        prev = g >= NG
        if prev:
            ins.prev = True; g -= NG
        gaps[g].append((prio, len(gaps[g]), ins))
    for j in range(16):
        b = 32 * j
        for t in range(8):
            slots[b + t] = mfma(S[0], ('a', AK + 4 * t), ('a', AQ[0] + 4 * t), c0=(t == 0))
            slots[b + 16 + t] = mfma(S[1], ('a', AK + 4 * t), ('a', (AN if (CFG['anq'] and j <= 7) else AQ[1]) + 4 * t), c0=(t == 0))
        for f in range(8):
            u, db = f >> 2, f & 3
            slots[b + 24 + f] = mfma(O[0] + 16 * db, ('a', AV + 4 * f), ('v', P[0] + 4 * u), c0=(j == 0 and u == 0))
            g = b + 40 + f
            m = mfma(O[1] + 16 * db, ('a', AV + 4 * f), ('v', P[1] + 4 * u), c0=(j == 0 and u == 0), prev=(g >= NG))
            slots[g % NG] = m
        for q in range(2):
            g0 = b + 9 + 16 * q; s = S[q]
            if j == 0:
                for x in maxpro(q): put(g0, x, 1)
            for r in range(16):
                put(g0 + r, valu(f'v_fma_f32 v{s+r}, v{s+r}, s{sC}, v{NMC[q]}', [f'v{s+r}'], [f'v{s+r}', f'v{NMC[q]}']), 2)
                put(g0 + r + 1, valu(f'v_exp_f32 v{s+r}, v{s+r}', [f'v{s+r}'], [f'v{s+r}'], k='trans'), 3)
                if j == 0 and r == 0:
                    put(g0 + r + 2, valu(f'v_mov_b32 v{L[q]}, v{s}', [f'v{L[q]}'], [f'v{s}']), 4)
                else:
                    put(g0 + r + 2, valu(f'v_add_f32 v{L[q]}, v{L[q]}, v{s+r}', [f'v{L[q]}'], [f'v{L[q]}', f'v{s+r}']), 4)
            for k in range(8):
                put(g0 + 3 + 2 * k, valu(f'v_cvt_pk_bf16_f32 v{P[q]+k}, v{s+2*k}, v{s+2*k+1}', [f'v{P[q]+k}'], [f'v{s+2*k}', f'v{s+2*k+1}']), 5)
        for k in range(16): put(b + 9 + k, vread(k >> 1, k & 1, j % 8), 0)
        for t in range(8): put(b + 24 + t, kread(t, (j + 1) % 8), 0)
        need = ('kv', (j + 1) % 16)
        if CFG['itst'] >= 0:
            put(b, I(f's_cmp_lg_u32 s{sB}, {CFG["itst"]}\ns_cbranch_scc1 L_is{j}\ns_memtime s[{60+2*j}:{61+2*j}]\nL_is{j}:', 'text'), -3)
        if CFG['bar2']:
            if j % 2 == 0:
                if CFG['barl']:
                    put(b + CFG['barg'], I('WAITVM', 'waitvm', tag=('kv', (j + 2) % 16)), 100); put(b + CFG['barg'], I('s_barrier', 'bar'), 101)
                else:
                    put(b + CFG['barg'], I('WAITVM', 'waitvm', tag=('kv', (j + 2) % 16)), -2); put(b + CFG['barg'], I('s_barrier', 'bar'), -1)
            grp = dma_tile(j + 6)
        else:
            put(b, I('WAITVM', 'waitvm', tag=need), -2); put(b, I('s_barrier', 'bar'), -1)
            grp = dma_tile(j + 7)
        for i, g in enumerate(grp):
            if CFG['m0e'] and i == 2:
                put(b + 2 + CFG['dsp'], g[0], 0); put(b + 1 + CFG['dsp'] * i, g[2], 0); continue
            for x in g: put(b + 1 + CFG['dsp'] * i, x, 0)
    QI1, QR1, QI0 = CFG['qi1'], CFG['qr1'], CFG['qi0']
    for i, g in enumerate(dma_q2(1, sXW) if CFG['qsp'] else dma_q(1, sXW)):
        for x in g: put(32 * QI1 + 17 + 8 * (i % 2) + 32 * (i // 2) if CFG['qsp'] else 32 * QI1 + 17 + 4 * (i % 4) + 32 * (i // 4), x, 0)
    put(32 * QR1 + 1, I('WAITVM', 'waitvm', tag=('q', 1)), -2)
    for t in range(8):
        put(32 * QR1 - (32 if CFG['anq'] else 8) + t, valu(f'v_add_u32 v{T+t}, s{sXW}, v{KA+t}', [f'v{T+t}'], [f'v{KA+t}']), 6)
        put(32 * QR1 + 1 + t, I(f'ds_read_b128 {rr("a",AN+4*t,4)}, v{T+t}', 'ds', R('a', AN + 4 * t, 4), [f'v{T+t}']), 0)
    put(32 * QI0 + 1, I('s_waitcnt lgkmcnt(0)', 'waitl0'), -2)
    for i, g in enumerate(dma_q2(0, sXW) if CFG['qsp'] else dma_q(0, sXW)):
        for x in g: put(32 * QI0 + 17 + 8 * (i % 2) + 32 * (i // 2) if CFG['qsp'] else 32 * QI0 + 17 + 4 * (i % 4) + 32 * (i // 4), x, 0)
    b = 32 * 15
    put(b + 8, I('WAITVM', 'waitvm', tag=('q', 0)), -2)
    for t in range(8):
        put(b + t, valu(f'v_add_u32 v{T+t}, s{sXW}, v{KA+t}', [f'v{T+t}'], [f'v{KA+t}']), 6)
        put(b + 8 + t, I(f'ds_read_b128 {rr("a",AQ[0]+4*t,4)}, v{T+t}', 'ds', R('a', AQ[0] + 4 * t, 4), [f'v{T+t}']), 0)
    sl = [32 * j + g for j in range(2, 7) for g in (0, 2, 3, 4, 6, 7, 8)]
    for r in range(32):
        put(sl[r] if CFG['anq'] else b + 25 + (r // 4) + (r // 4) // 2, valu(f'v_accvgpr_mov_b32 a{AQ[1]+r}, a{AN+r}', [f'a{AQ[1]+r}'], [f'a{AN+r}']), 6)
    b = 32 * 15
    for i, x in enumerate(lfin(0, sBit0, False)): put(b + 27 + (0, 0, 1, 2, 2, 3, 3, 3)[i], x, 7)
    for i, x in enumerate(lfin(1, sBit1, True)): put(NG + 11 + (0, 0, 1, 2, 2, 3, 3, 3)[i], x, 7)
    if CFG['wsp']:
        ins = oepi_all(0, T, True)
        for i, x in enumerate(ins): put(NG + CFG['e0a'] + i * CFG['e0n'] // len(ins), x, 8)
        ins = oepi_all(1, T1, True)
        for i, x in enumerate(ins): put(NG + CFG['o1s'] + i * CFG['e1n'] // len(ins), x, 8.5)
    for db in range(4 if not CFG['wsp'] else 0):
        ins = oepi(0, db, T, True); g0 = NG + 1 + 6 * db - (1 if db else 0); n = 6 if db else 5
        if db == 3: n = 5
        for i, x in enumerate(ins): put(g0 + i * n // len(ins), x, 8)
        ins = oepi(1, db, T1, True); g0 = NG + CFG['o1s'] + 4 * db
        for i, x in enumerate(ins): put(g0 + i * 4 // len(ins), x, 8.5)
    for q, g0 in ((0, NG + 23), (1, NG + 41)):
        rd, st = oflush(sOprev1 if q else sOprev, sO14 if q else sO4, True, ARB + 32 * q)
        for p in range(8):
            for x in rd[p]: put(g0 + (p // 4 if q == 0 else p // 2), x, 7.5)
        for p in range(8): put(max(NG + CFG['stoff'] + CFG['ssp'] * (8 * q + p), g0 + 4 + p), st[p], {0: 9, 1: -0.5, 2: 99}[CFG['stp']])
    out = []; marks = []
    for g in range(NG):
        if g % 32 == 0: marks.append(len(out))
        out.append(slots[g])
        items = sorted(gaps[g], key=lambda e: (e[0], e[1]))
        head = [x for p, _, x in items if p <= 0]
        streams = {}
        last = [x for p, _, x in items if p >= 99]
        for p, _, x in items:
            if 0 < p < 99:
                key = 'sm' if p <= 5 else p
                streams.setdefault(key, []).append(x)
        out += head
        sl = [streams[k] for k in streams]
        if not CFG['rr']:
            for l_ in sl: out += l_
            out += last
            continue
        while any(sl):
            best = None
            for l_ in sl:
                if not l_: continue
                x = l_[0]; st = 0
                for dist, p in enumerate(reversed(out[-4:])):
                    if p.k in ('valu', 'trans', 'perm') and (p.d & (x.u | x.d if x.k == 'perm' else x.u)):
                        lat = 3 if (x.k == 'perm' or p.k in ('trans', 'perm') or 'vcc' in p.d) else 2
                        st = max(st, lat - dist)
                    if p.k == 'salu' and x.k == 'salu' and p.t.startswith('s_cmp'): pass
                if out[-1].k == 'salu' and out[-1].t.startswith('s_cmp_lg_u64') and x.t.startswith('s_cselect'): st = -100
                key = (st, -len(l_))
                if best is None or key < best[0]: best = (key, l_)
            out.append(best[1].pop(0))
        out += last
    return out, marks

def add_waits(seq, passes):
    out = []; ds = []; vm = []
    for ins in seq:
        if ins.k == 'waitvm':
            n = None
            for i in range(len(vm) - 1, -1, -1):
                if vm[i] is not None and vm[i] == ins.tag:
                    n = len(vm) - 1 - i; break
            if n is None: n = 0
            w = I(f's_waitcnt vmcnt({min(n,63)})', 'wait', tag=('vm', ins, n), prev=ins.prev); out.append(w); continue
        if ins.k == 'waitl0':
            out.append(ins); ds = []; continue
        touched = ins.u | ins.d
        need = None
        for i, (pos, dst) in enumerate(ds):
            if dst & touched: need = i
        if need is not None:
            n = len(ds) - 1 - need
            recent = sum(1 for (pos, dst) in ds if pos > len(out) - CFG['lgk_window'])
            n = min(n, recent, 15)
            out.append(I(f's_waitcnt lgkmcnt({n})', 'wait', tag=('lgkm', ins, n), prev=ins.prev))
            ds = ds[len(ds) - n:] if n else []
        out.append(ins)
        if ins.k in ('ds', 'dsw'): ds.append((len(out), ins.d))
        if ins.k in ('vm', 'st'): vm.append(ins.tag)
        if ins.k == 'bar': pass
    return out

def states(x):
    if x.k == 'nop': return int(x.t.split()[1]) + 1
    return 1
def fix_hazards(seq, name):
    out = []; added = 0
    for ins in seq:
        if ins.k in ('label',): out.append(ins); continue
        req = 0; dist = 0
        for p in reversed(out):
            if dist >= 13: break
            if p.k == 'label': continue
            need = 0
            if p.k == 'mfma':
                if ins.k == 'mfma':
                    ab = ins.u
                    if p.d & ab: need = 12
                    elif (p.d & ins.c) and p.d != ins.c: need = 10
                    elif (p.d & ins.d) and not (p.d == ins.d and ins.c): need = 12
                elif ins.k in ('valu', 'trans', 'perm', 'st', 'ds', 'dsw', 'vm'):
                    if p.d & (ins.u | ins.d): need = 12
                    elif ins.k in ('valu', 'trans', 'perm') and (p.c & ins.d): need = 7
            elif p.k in ('valu', 'trans', 'perm'):
                if ins.k == 'mfma' and (p.d & (ins.u | ins.c)): need = 2
                if ins.k == 'perm' and (p.d & ins.u): need = max(need, 2)
                if p.k == 'trans' and ins.k in ('valu', 'perm', 'mfma', 'st', 'dsw') and (p.d & ins.u): need = max(need, 1)
                if p.k == 'perm' and (p.d & ins.u): need = max(need, 1)
                if ins.k == 'salu' and 'vcc' in p.d and 'vcc' in ins.u: need = max(need, 4)
            elif p.k in ('st', 'dsw'):
                if ins.k in ('valu', 'trans', 'perm') and (p.u & ins.d): need = 2
            elif p.k == 'salu' and 'm0' in p.t.split(',')[0] and ins.k == 'vm': need = 1
            req = max(req, need - dist)
            dist += states(p)
        if req > 0:
            out.append(I(f's_nop {req-1}', 'nop', prev=ins.prev)); added += 1
        out.append(ins)
    if added: print(f'; hazard nops added in {name}: {added}', file=sys.stderr)
    return out

def prologue_text(part=None):
    A = []; B = []; e = A.append
    e('s_cmp_ge_u32 s2, 256'); e('s_cbranch_scc1 L_end')
    e('s_load_dwordx4 s[4:7], s[0:1], 0'); e('s_load_dwordx4 s[48:51], s[0:1], 16')
    e('v_lshrrev_b32 v1, 6, v0'); e('v_and_b32 v0, 63, v0'); e('s_nop 0'); e(f'v_readfirstlane_b32 s{sWv}, v1')
    e('v_lshrrev_b32 v4, 4, v0'); e('v_and_b32 v6, 15, v0')
    for pp in range(4):
        e(f'v_add_u32 v7, {4*pp}, v4'); e('v_xor_b32 v7, v7, v6'); e('v_lshlrev_b32 v7, 4, v7')
        e(f'v_lshl_add_u32 v{QD+pp}, v4, 8, v7')
    e(f's_lshl_b32 s{sW2048}, s{sWv}, 11'); e(f's_lshl_b32 s{sW8192}, s{sWv}, 13'); e(f's_add_u32 s{sXW}, s{sW8192}, 131072')
    e(f's_and_b32 s{sX2}, s{sWv}, 1'); e(f's_add_u32 s{sX2}, s{sX2}, 6'); e(f's_lshl_b32 s{sX2}, s{sX2}, 13')
    e(f's_lshr_b32 s{sT}, s{sWv}, 1'); e(f's_lshl_b32 s{sT}, s{sT}, 16'); e(f's_add_u32 s{sX2}, s{sX2}, s{sT}')
    e(f's_lshl_b32 s{sT}, s{sWv}, 3'); e(f's_lshl_b32 s{sT3}, s{sWv}, 14')
    e(f'v_add_u32 v5, s{sT}, v4')
    e('v_and_b32 v7, 15, v5'); e('v_xor_b32 v7, v7, v6'); e('v_lshlrev_b32 v7, 4, v7'); e(f'v_lshl_add_u32 v{DK0}, v5, 8, v7')
    e('v_add_u32 v7, 4, v5'); e('v_and_b32 v7, 15, v7'); e('v_xor_b32 v7, v7, v6'); e('v_lshlrev_b32 v7, 4, v7'); e(f'v_lshl_add_u32 v{DK1}, v5, 8, v7')
    e('v_lshlrev_b32 v7, 2, v4'); e('v_xor_b32 v7, v7, v6'); e('v_lshlrev_b32 v7, 4, v7'); e(f'v_lshl_add_u32 v{DV}, v5, 8, v7')
    if CFG['pairmode'] == 1:
        e('s_lshr_b32 s3, s2, 4'); e('s_lshl_b32 s3, s3, 3'); e(f's_and_b32 s{sT}, s2, 7'); e(f's_add_u32 s3, s3, s{sT}')
        e(f's_lshr_b32 s{sHalf}, s2, 3'); e(f's_and_b32 s{sHalf}, s{sHalf}, 1')
    else:
        e('s_lshr_b32 s3, s2, 1'); e(f's_and_b32 s{sHalf}, s2, 1')
    if CFG['xor']: e(f's_mul_i32 s{sRot}, s{sHalf}, {CFG["xor"]*8192}')
    e(f's_lshl_b32 s{sHalf}, s{sHalf}, 16')
    e(f's_lshl_b32 s{sHead0}, s3, 17')
    if CFG['rot']:
        e(f's_lshr_b32 s{sRot}, s3, {CFG["rot"]-1}'); e(f's_and_b32 s{sRot}, s{sRot}, 15'); e(f's_lshl_b32 s{sRot}, s{sRot}, 13')
    e(f's_mov_b32 s{sHead}, s{sHead0}'); e(f's_add_u32 s{sHeadN}, s{sHead0}, 0x1000000')
    e(f's_add_u32 s{sQW}, s{sHead0}, s{sHalf}'); e(f's_add_u32 s{sQW}, s{sQW}, s{sT3}')
    srd = lambda srd, lo: [f's_mov_b32 s{srd}, s{lo}', f's_and_b32 s{srd+1}, s{lo+1}, 0xffff', f's_mov_b32 s{srd+2}, 0x4000000', f's_mov_b32 s{srd+3}, 0x20000']
    for r_, lo in ((sQ, 4), (sK, 6), (sV, 48), (sO, 50)):
        e(f's_mov_b32 s{r_+2}, 0x4000000'); e(f's_mov_b32 s{r_+3}, 0x20000')
    e('s_waitcnt lgkmcnt(0)')
    for r_, lo in ((sQ, 4), (sK, 6), (sV, 48), (sO, 50)):
        e(f's_mov_b32 s{r_}, s{lo}'); e(f's_and_b32 s{r_+1}, s{lo+1}, 0xffff')
    e = B.append if CFG['early'] else A.append
    e('v_and_b32 v2, 31, v0'); e('v_lshrrev_b32 v3, 5, v0')
    e('v_and_b32 v4, 15, v2')
    for t in range(8):
        e(f'v_add_u32 v5, {2*t}, v3'); e('v_xor_b32 v5, v5, v4'); e('v_lshlrev_b32 v5, 4, v5')
        e(f'v_lshl_add_u32 v{KA+t}, v2, 8, v5')
    if CFG['hsw']:
        e('v_bfe_u32 v6, v2, 3, 1'); e('v_xor_b32 v5, v6, v3'); e('v_lshlrev_b32 v6, 8, v2'); e('v_lshl_add_u32 v6, v5, 3, v6'); e(f'v_add_u32 v6, s{sXW}, v6')
    else:
        e('v_lshlrev_b32 v6, 8, v2'); e('v_lshl_add_u32 v6, v3, 3, v6'); e(f'v_add_u32 v6, s{sXW}, v6')
    for c in range(16):
        e(f'v_xor_b32 v5, {c}, v4'); e(f'v_lshl_add_u32 v{WA[c]}, v5, 4, v6')
    e('v_bfe_u32 v4, v0, 2, 2')
    e('v_lshl_add_u32 v5, v3, 2, v4')
    e('v_lshlrev_b32 v5, 8, v5')
    e('v_bfe_u32 v6, v0, 4, 1'); e('v_lshl_add_u32 v5, v6, 5, v5')
    e('v_and_b32 v6, 3, v0'); e('v_lshl_add_u32 v5, v6, 3, v5')
    for db in range(4):
        e(f'v_xor_b32 v6, {db}, v4'); e('v_lshl_add_u32 v6, v6, 6, v5')
        e(f'v_add_u32 v{VB+db}, 0x10000, v6')
    e('v_lshlrev_b32 v7, 4, v0'); e(f'v_add_u32 v{VST}, s{sT3}, v7')
    for pp in range(4): e(f'v_add_u32 v{XR+pp}, s{sXW}, v{QD+pp}')
    e(f's_mov_b32 s{sO4}, {OOB:#x}'); e(f's_mov_b32 s{sO14}, {OOB:#x}')
    e(f's_mov_b32 s{sOprev}, {OOB:#x}'); e(f's_mov_b32 s{sOprev1}, {OOB:#x}')
    e(f's_mov_b32 s{sB}, 0'); e(f's_mov_b32 s{sBad}, 0'); e(f's_mov_b32 s{sBit0}, 1'); e(f's_mov_b32 s{sBit1}, 0')
    e(f's_mov_b32 s{sC}, {fbits(cval):#x}'); e(f's_mov_b32 s{sNegC}, {fbits(-cval):#x}')
    thr = -1.0 if CFG['force_slow'] else 2.0 ** CFG['thr_log2']
    e(f's_mov_b32 s{sThr}, {fbits(thr):#x}')
    return [I(t, 'text') for t in (B if part == 'B' else A)]

def prologue_seq(blk0):
    seq = []
    t0 = dma_tile(0)
    for x in [y for g in dma_q(0, sXW) for y in g] + t0[0] + t0[1]: seq.append(x)
    t0[1][-1].tag = ('k0',)
    for g in dma_q(1, sX2): seq += g
    seq += [salu(f's_add_u32 s{sT}, s{sHead}, 0')] if not CFG['xor'] else [salu(f's_add_u32 s{sT}, s{sHead}, s{sRot}')]
    seq += t0[2] + t0[3]
    for tl in range(1, 6):
        gs = dma_tile(tl)
        if tl == 1: gs[1][-1].tag = ('k1',)
        for g in gs: seq += g
    seq.append(salu(f's_add_u32 s{sQW}, s{sHeadN}, s{sHalf}')); seq.append(salu(f's_add_u32 s{sQW}, s{sQW}, s{sT3}'))
    seq += prologue_text('B')
    for t in range(8):
        seq.append(valu(f'v_add_u32 v{T+t}, s{sXW}, v{KA+t}', [f'v{T+t}'], [f'v{KA+t}']))
        seq.append(valu(f'v_add_u32 v{T+8+t}, s{sX2}, v{KA+t}', [f'v{T+8+t}'], [f'v{KA+t}']))
    seq.append(I('WAITVM', 'waitvm', tag=('k0',))); seq.append(I('s_barrier', 'bar'))
    for t in range(8):
        seq.append(I(f'ds_read_b128 {rr("a",AQ[0]+4*t,4)}, v{T+t}', 'ds', R('a', AQ[0] + 4 * t, 4), [f'v{T+t}']))
        seq.append(kread(t, 0))
    g = -1
    for x in blk0:
        if x.k == 'mfma':
            g += 1
            if g == 24:
                seq.append(I('WAITVM', 'waitvm', tag=(('k1',) if CFG['k1s'] else ('kv', 2 if CFG['bar2'] else 1)))); seq.append(I('s_waitcnt lgkmcnt(0)', 'waitl0')); seq.append(I('s_barrier', 'bar'))
                for gg in dma_tile(6) + ([] if CFG['bar2'] else dma_tile(7)): seq += gg
        if x.prev or x.k in ('waitvm', 'bar', 'vm', 'text') or (x.k in ('salu', 'nop') and not x.prev): continue
        seq.append(x)
        if x.k == 'mfma' and g == 7:
            seq.append(I('WAITVM', 'waitvm', tag=('kv', 0))); seq.append(I('s_barrier', 'bar'))
            for t in range(8):
                a1 = AN if CFG['anq'] else AQ[1]
                seq.append(I(f'ds_read_b128 {rr("a",a1+4*t,4)}, v{T+8+t}', 'ds', R('a', a1 + 4 * t, 4), [f'v{T+8+t}']))
    if CFG['k1s']:
        seq.append(I('WAITVM', 'waitvm', tag=('kv', 2 if CFG['bar2'] else 1))); seq.append(I('s_barrier', 'bar'))
    return seq

def stamp(i):
    return [f's_memtime s[{60+2*i}:{61+2*i}]', 's_waitcnt lgkmcnt(0)'] if CFG['stamps'] else []
def blockend():
    return [salu(f's_add_u32 s{sOprev}, s{sHead}, s{sHalf}'), salu(f's_add_u32 s{sOprev1}, s{sOprev}, 8192'),
            salu(f's_mov_b32 s{sHead}, s{sHeadN}'),
            salu(f's_add_u32 s{sB}, s{sB}, 1'),
            salu(f's_add_u32 s{sHeadN}, s{sHeadN}, 0x1000000'),
            salu(f's_cmp_ge_u32 s{sB}, 3'), salu(f's_cselect_b32 s{sHeadN}, {OOB:#x}, s{sHeadN}'),
            salu(f's_add_u32 s{sQW}, s{sHeadN}, s{sHalf}'), salu(f's_add_u32 s{sQW}, s{sQW}, s{sT3}'),
            salu(f's_add_u32 s{sO4}, s{sOprev}, 4096'), salu(f's_add_u32 s{sO14}, s{sOprev1}, 4096'),
            salu(f's_lshl_b32 s{sT2}, s{sB}, 1'),
            salu(f's_lshl_b32 s{sBit0}, 1, s{sT2}'), salu(f's_lshr_b32 s{sBit1}, s{sBit0}, 1'),
            salu(f's_cmp_lt_u32 s{sB}, 4')]

def slow_text():
    A = []; e = A.append
    if CFG['fx']:
        e(f's_cmp_eq_u32 s{sBad}, 0'); e('s_cbranch_scc1 L_end'); e('s_waitcnt vmcnt(0) lgkmcnt(0)'); e('s_barrier')
    else:
        e('s_waitcnt vmcnt(0) lgkmcnt(0)'); e('s_barrier')
        e(f's_cmp_eq_u32 s{sBad}, 0'); e('s_cbranch_scc1 L_end')
    G = T; M = MT[0]; N = NMC[0]; Ls = L[0]; s = S[0]; VT = T + 4
    e(f'v_subrev_u32 v{T+8}, s{sW2048}, v{DV}')
    for db in range(4): e(f'v_add_u32 v{VT+db}, s{sW8192}, v{VB+db}')
    e(f'v_mbcnt_lo_u32_b32 v{G}, -1, 0'); e(f'v_mbcnt_hi_u32_b32 v{G}, -1, v{G}')
    e(f'v_lshrrev_b32 v{G+1}, 5, v{G}'); e(f'v_and_b32 v{G}, 31, v{G}'); e(f'v_lshlrev_b32 v{G}, 8, v{G}'); e(f'v_lshl_add_u32 v{G}, v{G+1}, 4, v{G}')
    e(f's_mov_b32 s{sIdx}, 0')
    e('L_slow_loop:')
    e(f's_lshr_b32 s{sT}, s{sBad}, s{sIdx}'); e(f's_and_b32 s{sT}, s{sT}, 1'); e(f's_cmp_eq_u32 s{sT}, 0'); e('s_cbranch_scc1 L_slow_next')
    e(f's_lshr_b32 s{sT}, s{sIdx}, 1'); e(f's_lshl_b32 s{sT}, s{sT}, 24'); e(f's_add_u32 s{sHead}, s{sHead0}, s{sT}')
    e(f's_and_b32 s{sT}, s{sIdx}, 1'); e(f's_lshl_b32 s{sT}, s{sT}, 13'); e(f's_add_u32 s{sOcur}, s{sHead}, s{sHalf}'); e(f's_add_u32 s{sOcur}, s{sOcur}, s{sT}')
    e(f's_lshl_b32 s{sT}, s{sWv}, 14'); e(f's_add_u32 s{sT}, s{sT}, s{sOcur}')
    for t in range(8): e(f'buffer_load_dwordx4 {rr("a",AQ[0]+4*t,4)}, v{G}, s[{sQ}:{sQ+3}], s{sT} offen offset:{32*t}')
    e(f'v_mov_b32 v{M}, 0xff800000')
    def ktile():
        e(f's_lshl_b32 s{sT}, s{sTile}, 13'); e(f's_add_u32 s{sT}, s{sT}, s{sHead}')
        for t in range(8): e(f'buffer_load_dwordx4 {rr("a",AK+4*t,4)}, v{G}, s[{sK}:{sK+3}], s{sT} offen offset:{32*t}')
    def qk():
        e('s_waitcnt vmcnt(0)')
        for t in range(8): e(mfma(s, ('a', AK + 4 * t), ('a', AQ[0] + 4 * t), c0=(t == 0)).t)
        e('s_nop 15')
    e(f's_mov_b32 s{sTile}, 0'); e('L_slow_p1:')
    ktile(); qk()
    for r in range(0, 16, 2): e(f'v_max3_f32 v{M}, v{M}, v{s+r}, v{s+r+1}')
    e(f's_add_u32 s{sTile}, s{sTile}, 1'); e(f's_cmp_lt_u32 s{sTile}, 16'); e('s_cbranch_scc1 L_slow_p1')
    e(f'v_mov_b32 v{N}, v{M}'); e('s_nop 1'); e(f'v_permlane32_swap_b32 v{M}, v{N}'); e('s_nop 1'); e(f'v_max_f32 v{M}, v{M}, v{N}')
    e(f'v_mul_f32 v{N}, s{sNegC}, v{M}'); e(f'v_mov_b32 v{Ls}, 0')
    for r in range(64): e(f'v_mov_b32 v{O[0]+r}, 0')
    e(f's_mov_b32 s{sTile}, 0'); e('L_slow_p2:')
    ktile()
    e(f's_add_u32 m0, s{sW8192}, 65536'); e('s_nop 0')
    for p in range(4): e(f'buffer_load_dwordx4 v{T+8}, s[{sV}:{sV+3}], s{sT} offen offset:{1024*p} lds')
    e(f's_add_u32 m0, s{sW8192}, {65536+4096}'); e(f's_add_u32 s{sT}, s{sT}, 4096')
    for p in range(4): e(f'buffer_load_dwordx4 v{T+8}, s[{sV}:{sV+3}], s{sT} offen offset:{1024*p} lds')
    qk()
    for r in range(16): e(f'v_fma_f32 v{s+r}, v{s+r}, s{sC}, v{N}')
    for r in range(16): e(f'v_exp_f32 v{s+r}, v{s+r}')
    e('s_nop 0')
    for r in range(16): e(f'v_add_f32 v{Ls}, v{Ls}, v{s+r}')
    for k in range(8): e(f'v_cvt_pk_bf16_f32 v{P[0]+k}, v{s+2*k}, v{s+2*k+1}')
    for f in range(8):
        for sec in range(2):
            e(f'ds_read_b64_tr_b16 {rr("a",AV+4*f+2*sec,2)}, v{VT+(f&3)} offset:{(f>>2)*4096+sec*2048}')
    e('s_waitcnt lgkmcnt(0)')
    for f in range(8): e(mfma(O[0] + 16 * (f & 3), ('a', AV + 4 * f), ('v', P[0] + 4 * (f >> 2))).t)
    e(f's_add_u32 s{sTile}, s{sTile}, 1'); e(f's_cmp_lt_u32 s{sTile}, 16'); e('s_cbranch_scc1 L_slow_p2')
    e('s_nop 15')
    e(f'v_mov_b32 v{M}, v{Ls}'); e('s_nop 1'); e(f'v_permlane32_swap_b32 v{Ls}, v{M}'); e('s_nop 1'); e(f'v_add_f32 v{Ls}, v{Ls}, v{M}')
    e(f'v_rcp_f32 v{INV[0]}, v{Ls}'); e('s_nop 1')
    sv = CFG.get('_x')
    seq = []
    global T_save
    for db in range(4): seq += oepi_slow(db)
    e(f's_add_u32 s{sO4}, s{sOcur}, 4096')
    rd, st = oflush(sOcur, sO4, False, ARB)
    seq += [x for g in rd for x in g] + [I('s_waitcnt lgkmcnt(0)', 'wait')] + st
    for x in fix_hazards(seq, 'slow-epi'): e(x.t)
    e('s_waitcnt vmcnt(0)')
    e('L_slow_next:')
    e(f's_add_u32 s{sIdx}, s{sIdx}, 1'); e(f's_cmp_lt_u32 s{sIdx}, 8'); e('s_cbranch_scc1 L_slow_loop')
    return [I(t, 'text') for t in A]
def oepi_slow(db): return oepi(0, db, S[1], False)

def main():
    blk, marks = build_block()
    def filt(l):
        if CFG['nodma']: l = [x for x in l if x.k not in ('vm', 'st')]
        if CFG['novalu'] == 1: l = [x for x in l if x.k not in ('valu', 'trans', 'perm')]
        if CFG['nomfma']: l = [x for x in l if x.k != 'mfma']
        if CFG['nost']: l = [x for x in l if x.k != 'st']
        if CFG['nolds']: l = [x for x in l if x.k not in ('ds', 'dsw')]
        return l
    it0 = blk[:marks[1]]; rest = filt(blk[marks[1]:]);
    blk2, _ = build_block()
    pro = prologue_seq(blk2[:marks[1]])
    it0 = filt(it0)
    blk = it0 + rest
    be = blockend()
    entry = I('L_it1:', 'label')
    full = add_waits(pro + rest + be + it0 + rest + be + it0 + rest + be, 1)
    wm = {}
    for x in full:
        if x.k == 'wait' and x.tag:
            key = (x.tag[0], id(x.tag[1])); wm[key] = min(wm.get(key, 99), x.tag[2])
    def apply(l):
        o = []
        for x in l:
            if x.k == 'waitvm':
                o.append(I(f's_waitcnt vmcnt({min(wm[("vm", id(x))], 63)})', 'wait', prev=x.prev)); continue
            if ('lgkm', id(x)) in wm: o.append(I(f's_waitcnt lgkmcnt({wm[("lgkm", id(x))]})', 'wait', prev=x.prev))
            o.append(x)
        return o
    pro_w = apply(pro); it0_w = apply(it0); rest_w = apply(rest + be)
    body = it0_w + rest_w
    mk = I('', 'label')
    a1 = fix_hazards(pro_w + [mk] + rest_w[:40], 'pro'); pro_f = a1[:a1.index(mk)]; r_a = a1[a1.index(mk) + 1:]
    mk2 = I('', 'label'); mk3 = I('', 'label')
    a2 = fix_hazards(rest_w[-60:] + [mk2] + it0_w + [mk3] + rest_w, 'steady')
    it0_f = a2[a2.index(mk2) + 1:a2.index(mk3)]; rest_f = a2[a2.index(mk3) + 1:]
    chk = fix_hazards(pro_f[-40:] + rest_f[:60], 'entrycheck'); assert len(chk) == 100, len(chk)
    body_f = it0_f + [entry] + rest_f
    tail = [x for x in blk if x.prev and x.k not in ('waitvm',)]
    if CFG['stt'] >= 0:
        def rs(x):
            t = x.t[:len(x.t) - len(LDF[CFG['stf']])] + LDF[CFG['stt']]
            return I(t, x.k, x.d, x.u, x.tag, x.prev, x.c)
        tail = [rs(x) if x.k == 'st' else x for x in tail]
    if CFG['tord']:
        sts = [x for x in tail if x.k == 'st']; oth = [x for x in tail if x.k != 'st']
        arb0 = set(R('a', ARB, 32))
        last0 = max(i for i, x in enumerate(oth) if x.k == 'ds' and (x.d & arb0))
        k = last0 + 1 + CFG['tord']
        tail = oth[:k] + sts[:8] + oth[k:] + sts[8:]
    tail_w = add_waits(tail, 1)
    mark3 = I('', 'label')
    t2 = fix_hazards(body[-60:] + [mark3] + [I('s_waitcnt lgkmcnt(0)', 'wait')] + tail_w, 'tail')
    tail_f = t2[t2.index(mark3) + 1:]
    out = []
    hdr = open('standalone__gqa_softmax__near_ridge.s.ref').read().split('\n')
    name = 'standalone__gqa_softmax__near_ridge_kernel'
    for ln in hdr:
        if ln.startswith('; @launch'): out.append('; @launch grid=(256,1,1) block=(256,1,1) lds=163840')
        elif ln.startswith(';'): out.append(ln)
        else: break
    out += ['.amdgcn_target "amdgcn-amd-amdhsa--gfx950"', '.text', f'.globl {name}', '.p2align 8', f'.type {name},@function', f'{name}:']
    out += stamp(0) + (['s_memrealtime s[80:81]'] if CFG['stamps'] else [])
    out += [x.t for x in prologue_text()]
    out += [x.t for x in pro_f]
    out.append('s_nop 0' if CFG.get('pad') else '.p2align 3' if False else '')
    out += stamp(1)
    out.append('s_branch L_it1')
    out.append('L_loop:')
    out += [x.t for x in body_f]
    if CFG['stamps']:
        out += ['s_cselect_b32 s3, 1, 0', 's_memtime s[84:85]', 's_waitcnt lgkmcnt(0)']
        for b in range(4): out += [f's_cmp_eq_u32 s{sB}, {b+1}', f's_cselect_b32 s{64+2*b}, s84, s{64+2*b}']
        out += ['s_cmp_eq_u32 s3, 1']
    out.append('s_cbranch_scc1 L_loop')
    out += [x.t for x in tail_f]
    if CFG['stamps']:
        out += ['s_waitcnt vmcnt(0)'] + stamp(6) + ['s_memrealtime s[82:83]', 's_load_dwordx2 s[86:87], s[0:1], 32', 's_waitcnt lgkmcnt(0)',
                f's_cmp_lg_u32 s2, {CFG["stampwg"]}', 's_cbranch_scc1 L_nost', f's_cmp_lg_u32 s{sWv}, 0', 's_cbranch_scc1 L_nost',
                's_mov_b32 s88, s86', 's_and_b32 s89, s87, 0xffff', 's_mov_b32 s90, 256', 's_mov_b32 s91, 0x20000', 'v_mov_b32 v1, 0']
        for i, r in enumerate([62, 64, 66, 68, 70, 72]):
            out += [f's_sub_u32 s3, s{r}, s60', 'v_mov_b32 v2, s3', f'buffer_store_dword v2, v1, s[88:91], 0 offen offset:{4*i}']
        out += ['s_sub_u32 s3, s82, s80', 'v_mov_b32 v2, s3', 'buffer_store_dword v2, v1, s[88:91], 0 offen offset:24', 's_waitcnt vmcnt(0)', 'L_nost:']
    if CFG['itst'] >= 0 and CFG['wgst']:
        out += ['s_waitcnt vmcnt(0) lgkmcnt(0)', 's_memtime s[92:93]', 's_waitcnt lgkmcnt(0)']
    elif CFG['itst'] >= 0:
        out += ['s_waitcnt vmcnt(0) lgkmcnt(0)', 's_memtime s[92:93]', 's_load_dwordx2 s[96:97], s[0:1], 32', 's_waitcnt lgkmcnt(0)',
                f's_cmp_lg_u32 s2, {CFG["stampwg"]}', 's_cbranch_scc1 L_nost', f's_cmp_lg_u32 s{sWv}, 0', 's_cbranch_scc1 L_nost',
                's_and_b32 s97, s97, 0xffff', 's_mov_b32 s98, 256', 's_mov_b32 s99, 0x20000', 'v_mov_b32 v1, 0']
        for i in range(16):
            nxt = 62 + 2 * i
            out += [f's_sub_u32 s3, s{nxt}, s{60+2*i}', 'v_mov_b32 v2, s3', f'buffer_store_dword v2, v1, s[96:99], 0 offen offset:{4*i}']
        out += ['s_waitcnt vmcnt(0)', 'L_nost:']
    if CFG['wgst'] and CFG['itst'] >= 0:
        out += ['s_load_dwordx2 s[96:97], s[0:1], 40', 's_waitcnt lgkmcnt(0)', f's_cmp_lg_u32 s{sWv}, 0', 's_cbranch_scc1 L_nost3',
                's_and_b32 s97, s97, 0xffff', 's_mov_b32 s98, 0x10000', 's_mov_b32 s99, 0x20000', 's_lshl_b32 s3, s2, 6', 's_add_u32 s3, s3, 16384', 'v_mov_b32 v1, s3']
        for i in range(16):
            out += [f's_sub_u32 s3, s{62+2*i}, s{60+2*i}', 'v_mov_b32 v2, s3', f'buffer_store_dword v2, v1, s[96:99], 0 offen offset:{4*i}']
        out += ['s_waitcnt vmcnt(0)', 'L_nost3:']
    elif CFG['wgst']:
        out += ['s_load_dwordx2 s[88:89], s[0:1], 40', 's_waitcnt lgkmcnt(0)', f's_cmp_lg_u32 s{sWv}, 0', 's_cbranch_scc1 L_nost2',
                's_and_b32 s89, s89, 0xffff', 's_mov_b32 s90, 0x10000', 's_mov_b32 s91, 0x20000', 's_lshl_b32 s3, s2, 6', 'v_mov_b32 v1, s3']
        vals = ['s80', 's82', ('s72', 's60'), ('s62', 's60'), ('s64', 's60'), ('s66', 's60'), ('s68', 's60'), ('s70', 's60'), ('s72', 's60')]
        for i, r in enumerate(vals):
            out += ([f's_sub_u32 s3, {r[0]}, {r[1]}', 'v_mov_b32 v2, s3'] if isinstance(r, tuple) else [f'v_mov_b32 v2, {r}']) + [f'buffer_store_dword v2, v1, s[88:91], 0 offen offset:{4*i}']
        out += ['s_waitcnt vmcnt(0)', 'L_nost2:']
    out += [x.t for x in slow_text()]
    out += ['L_end:', 's_endpgm', '.section .rodata,"a"', '.p2align 6', f'.amdhsa_kernel {name}',
            '  .amdhsa_next_free_vgpr 512', '  .amdhsa_next_free_sgpr 102', '  .amdhsa_accum_offset 256',
            '  .amdhsa_group_segment_fixed_size 0', '  .amdhsa_kernarg_size 48', '  .amdhsa_user_sgpr_count 2',
            '  .amdhsa_user_sgpr_kernarg_segment_ptr 1', '  .amdhsa_system_sgpr_workgroup_id_x 1', '.end_amdhsa_kernel']
    open(sys.argv[1], 'w').write('\n'.join(o for o in out if o != '') + '\n')
    n = lambda k: sum(1 for x in body_f if x.k == k)
    print('body instrs', len(body_f), {k: n(k) for k in ('mfma', 'valu', 'trans', 'perm', 'ds', 'vm', 'st', 'salu', 'wait', 'nop', 'bar')}, file=sys.stderr)
main()
```

```python
import sys, struct, math
CFG = dict(kl=0, doff=3, stt=-1, barg=0, barl=0, qsp=0, m0e=0, fx=0, anq=0, k1s=0, wsp=0, e0a=1, e0n=22, e1n=17, bar2=0, hsw=0, pkm=0, early=0, tord=0, stp=0, stv=0, stoff=27, dsp=4, ssp=4, o1s=24, peel=1, rr=1, m16=0, wgst=0, qi1=2, qr1=8, qi0=9, xor=0, ldf=0, stf=0, nomfma=0, nost=0, itst=-1, nodma=0, novalu=0, nolds=0, rot=0, stamps=0, stampwg=0, force_slow=0, thr_log2=30, lgk_window=18, pairmode=1)
for a in sys.argv[2:]:
    k, v = a.split('='); CFG[k] = int(v)

LDF = ['', ' nt', ' sc1', ' sc0 sc1', ' sc0', ' sc0 sc1 nt', ' sc1 nt']
class I:
    __slots__ = ('t', 'k', 'd', 'u', 'tag', 'prev', 'c')
    def __init__(s, t, k, d=(), u=(), tag=None, prev=False, c=()):
        s.t = t; s.k = k; s.d = set(d); s.u = set(u); s.tag = tag; s.prev = prev; s.c = set(c)
def R(p, a, n=1): return [f'{p}{a+i}' for i in range(n)]
def rr(p, a, n): return f'{p}[{a}:{a+n-1}]' if n > 1 else f'{p}{a}'

O = [0, 64]; S = [128, 144]; P = [160, 168]
KA = 176; VB = 192; XR = 196
WA = [184,185,186,187,188,189,190,191,228,229,230,231,252,253,254,255]
T1 = 236
DK0 = 200; DK1 = 201; DV = 202; VST = 203; QD = 232
L = [204, 205]; INV = [206, 207]; NMC = [208, 209]; MT = [210, 211]
T = 212
AQ = [0, 32]; AK = 64; AV = 96; AN = 128; ARB = 160
sQ, sK, sV, sO = 8, 12, 16, 20
sW2048 = 24; sW8192 = 25; sHead = 26; sHeadN = 27; sQN = 28; sOprev = 29; sT = 30; sB = 31
sC = 32; sNegC = 33; sBad = 34; sBit0 = 35; sBit1 = 36; sT2 = 37; sHalf = 38; sOprev1 = 39; sThr = 40
sHead0 = 41; sIdx = 42; sTile = 43; sT3 = 44; sOcur = 45; sWv = 46; sRot = 47; sXW = 52; sQW = 53; sO4 = 54; sX2 = 55; sO14 = 56
OOB = 0x40000000
cval = math.log2(math.e) / math.sqrt(128.0)
def fbits(x): return struct.unpack('<I', struct.pack('<f', x))[0]

def mfma(dst, a, b, c0=False, prev=False):
    ctext = '0' if c0 else rr('v', dst, 16)
    if CFG['m16']:
        c1 = '0' if c0 else rr('v', dst, 4); c2 = '0' if c0 else rr('v', dst + 8, 4)
        return I(f'v_mfma_f32_16x16x32_bf16 {rr("v",dst,4)}, {rr(a[0],a[1],4)}, {rr(b[0],b[1],4)}, {c1}\nv_mfma_f32_16x16x32_bf16 {rr("v",dst+8,4)}, {rr(a[0],a[1],4)}, {rr(b[0],b[1],4)}, {c2}', 'mfma',
             R('v', dst, 16), R(a[0], a[1], 4) + R(b[0], b[1], 4), prev=prev, c=([] if c0 else R('v', dst, 16)))
    return I(f'v_mfma_f32_32x32x16_bf16 {rr("v",dst,16)}, {rr(a[0],a[1],4)}, {rr(b[0],b[1],4)}, {ctext}', 'mfma',
             R('v', dst, 16), R(a[0], a[1], 4) + R(b[0], b[1], 4), prev=prev, c=([] if c0 else R('v', dst, 16)))
def valu(t, d, u, prev=False, k='valu'): return I(t, k, d, u, prev=prev)
def salu(t, prev=False): return I(t, 'salu', prev=prev)

def kaddr(pos): return (KA, pos * 8192)
def vaddr(pos): return (VB, pos * 8192)
def kread(t, pos):
    b, o = kaddr(pos)
    return I(f'ds_read_b128 {rr("a",AK+4*t,4)}, v{b+t} offset:{o}', 'ds', R('a', AK + 4 * t, 4), [f'v{b+t}'])
def vread(f, sec, pos):
    u, db = f >> 2, f & 3
    b, o = vaddr(pos)
    return I(f'ds_read_b64_tr_b16 {rr("a",AV+4*f+2*sec,2)}, v{b+db} offset:{o+u*4096+sec*2048}', 'ds',
             R('a', AV + 4 * f + 2 * sec, 2), [f'v{b+db}'])
def ld(v, srd, off, tag): return I(f'buffer_load_dwordx4 v{v}, s[{srd}:{srd+3}], s{sT} offen offset:{off}{LDF[CFG["ldf"]]} lds', 'vm', [], [f'v{v}'], tag=tag)
def dma_tile(tile):
    nb = tile >= 16; tt = tile % 16; pos = tt % 8
    kb = pos * 8192; vb = 65536 + pos * 8192
    src = sHeadN if nb else sHead
    tag = ('kv', tt)
    if CFG['xor']: pre = [salu(f's_xor_b32 s{sT}, s{sRot}, {tt*8192}'), salu(f's_add_u32 m0, s{sW2048}, {kb}'), salu(f's_add_u32 s{sT}, s{sT}, s{src}')]
    else: pre = [salu(f's_add_u32 m0, s{sW2048}, {kb}'), salu(f's_add_u32 s{sT}, s{src}, {tt*8192}')]
    return [pre + [ld(DK0, sK, 0, tag)], [ld(DK1, sK, 1024, tag)],
            [salu(f's_add_u32 m0, s{sW2048}, {vb}'), I('s_nop 0', 'nop'), ld(DV, sV, 0, tag)], [ld(DV, sV, 1024, tag)]]
def dma_kv(isv, tile, tag):
    nb = tile >= 16; tt = tile % 16; pos = tt % 8
    src = sHeadN if nb else sHead
    pre = [salu(f's_add_u32 m0, s{sW2048}, {(65536 if isv else 0) + pos*8192}'), salu(f's_add_u32 s{sT}, s{src}, {tt*8192}')]
    if isv: return pre, ld(DV, sV, 0, tag), ld(DV, sV, 1024, tag)
    return pre, ld(DK0, sK, 0, tag), ld(DK1, sK, 1024, tag)
def dma_q(qb, ldsbase):
    tag = ('q', qb); g = []
    for p in range(8):
        pre = []
        if p % 4 == 0:
            pre = [salu(f's_add_u32 m0, s{ldsbase}, {(p>>2)*4096}'), salu(f's_add_u32 s{sT}, s{sQW}, {qb*8192+(p>>2)*4096}')]
        g.append(pre + [ld(QD + (p & 3), sQ, (p & 3) * 1024, tag)])
    return g

def dma_q2(qb, ldsbase):
    tag = ('q', qb); g = []
    for p in range(8):
        pre = []
        if p % 2 == 0:
            pre = [salu(f's_add_u32 m0, s{ldsbase}, {(p>>2)*4096}'), salu(f's_add_u32 s{sT}, s{sQW}, {qb*8192+(p>>2)*4096}')]
        g.append(pre + [ld(QD + (p & 3), sQ, (p & 3) * 1024, tag)])
    return g
def lfin(q, bit, prev):
    l, inv, t = L[q], INV[q], MT[q]
    return [valu(f'v_mov_b32 v{t}, v{l}', [f'v{t}'], [f'v{l}'], prev),
            valu(f'v_permlane32_swap_b32 v{l}, v{t}', [f'v{l}', f'v{t}'], [f'v{l}', f'v{t}'], prev, 'perm'),
            valu(f'v_add_f32 v{l}, v{l}, v{t}', [f'v{l}'], [f'v{l}', f'v{t}'], prev),
            valu(f'v_rcp_f32 v{inv}, v{l}', [f'v{inv}'], [f'v{l}'], prev, 'trans'),
            valu(f'v_cmp_nge_f32 vcc, s{sThr}, v{l}', ['vcc'], [f'v{l}'], prev),
            I(f's_cmp_lg_u64 vcc, 0', 'salu', [], ['vcc'], prev=prev), salu(f's_cselect_b32 s{sT2}, s{bit}, 0', prev),
            salu(f's_or_b32 s{sBad}, s{sBad}, s{sT2}', prev)]
def oepi(q, db, tb0, prev):
    o = O[q] + 16 * db; inv = INV[q]; r = []
    for hf in range(2):
        tb = tb0 + 8 * hf
        if CFG['pkm']:
            ip = inv & ~1; sel = 'op_sel_hi:[1,0]' if inv % 2 == 0 else 'op_sel:[0,1] op_sel_hi:[1,1]'
            for i in range(0, 8, 2):
                r.append(valu(f'v_pk_mul_f32 v[{tb+i}:{tb+i+1}], v[{o+8*hf+i}:{o+8*hf+i+1}], v[{ip}:{ip+1}] {sel}', [f'v{tb+i}', f'v{tb+i+1}'], [f'v{o+8*hf+i}', f'v{o+8*hf+i+1}', f'v{inv}'], prev))
            continue
        for i in range(8):
            r.append(valu(f'v_mul_f32 v{tb+i}, v{o+8*hf+i}, v{inv}', [f'v{tb+i}'], [f'v{o+8*hf+i}', f'v{inv}'], prev))
    for hf in range(2):
        tb = tb0 + 8 * hf
        for i in range(4):
            r.append(valu(f'v_cvt_pk_bf16_f32 v{tb+i}, v{tb+2*i}, v{tb+2*i+1}', [f'v{tb+i}'], [f'v{tb+2*i}', f'v{tb+2*i+1}'], prev))
    for hf in range(2):
        tb = tb0 + 8 * hf
        for e_ in range(2):
            c = 4 * db + 2 * hf + e_
            r.append(I(f'ds_write_b64 v{WA[c]}, {rr("v",tb+2*e_,2)}', 'dsw', [], R('v', tb + 2 * e_, 2) + [f'v{WA[c]}'], prev=prev))
    return r
def oepi_all(q, tb0, prev):
    seq = []; pend = []
    for db in range(4):
        ins = oepi(q, db, tb0, prev)
        nm = 4 if CFG['pkm'] else 8
        mul, cvt, wr = ins[:2*nm], ins[2*nm:2*nm+8], ins[2*nm+8:]
        for hf in range(2):
            work = mul[nm*hf:nm*hf+nm] + cvt[4*hf:4*hf+4]
            seq += work[:2] + pend[:1] + work[2:nm] + pend[1:] + work[nm:]
            pend = wr[2*hf:2*hf+2]
    return seq + pend
def oflush(soff, soff4, prev, ab):
    rd = []; st = []
    for p in range(8):
        tb = ab + 4 * p
        if CFG['hsw'] and (p & 2):
            rd.append([I(f'ds_read_b64 {rr("a",tb,2)}, v{XR+(p&3)} offset:{p*1024+8}', 'ds', R('a', tb, 2), [f'v{XR+(p&3)}'], prev=prev),
                       I(f'ds_read_b64 {rr("a",tb+2,2)}, v{XR+(p&3)} offset:{p*1024}', 'ds', R('a', tb + 2, 2), [f'v{XR+(p&3)}'], prev=prev)])
        else:
            rd.append([I(f'ds_read_b128 {rr("a",tb,4)}, v{XR+(p&3)} offset:{p*1024}', 'ds', R('a', tb, 4), [f'v{XR+(p&3)}'], prev=prev)])
        if CFG['stv'] == 1:
            st.append(I(f'buffer_store_dwordx4 {rr("v",T1,4)}, v{VST}, s[{sO}:{sO+3}], s{soff4 if p >= 4 else soff} offen offset:{(p&3)*1024}{LDF[CFG["stf"]]}', 'st', [], R('a', tb, 4) + [f'v{VST}'], prev=prev, tag=('st',)))
        elif CFG['stv'] == 2:
            st.append(I(f'buffer_store_dword v{T1}, v{VST}, s[{sO}:{sO+3}], s{soff4 if p >= 4 else soff} offen offset:{(p&3)*1024}{LDF[CFG["stf"]]}', 'st', [], R('a', tb, 4) + [f'v{VST}'], prev=prev, tag=('st',)))
        elif CFG['stv'] == 3:
            st.append(I(f'buffer_store_dwordx2 {rr("a",tb,2)}, v{VST}, s[{sO}:{sO+3}], s{soff4 if p >= 4 else soff} offen offset:{(p&3)*1024}{LDF[CFG["stf"]]}', 'st', [], R('a', tb, 4) + [f'v{VST}'], prev=prev, tag=('st',)))
        else:
            st.append(I(f'buffer_store_dwordx4 {rr("a",tb,4)}, v{VST}, s[{sO}:{sO+3}], s{soff4 if p >= 4 else soff} offen offset:{(p&3)*1024}{LDF[CFG["stf"]]}', 'st', [], R('a', tb, 4) + [f'v{VST}'], prev=prev, tag=('st',)))
    return rd, st
def maxpro(q):
    s = S[q]; a, b = MT[q], NMC[q]
    m3 = lambda d, x, y, z: valu(f'v_max3_f32 v{d}, v{x}, v{y}, v{z}', [f'v{d}'], [f'v{x}', f'v{y}', f'v{z}'])
    r = [m3(a, s, s+1, s+2), m3(b, s+3, s+4, s+5), m3(a, a, s+6, s+7), m3(b, b, s+8, s+9), m3(a, a, s+10, s+11), m3(b, b, s+12, s+13),
         m3(a, a, s+14, s+15), valu(f'v_max_f32 v{a}, v{a}, v{b}', [f'v{a}'], [f'v{a}', f'v{b}']),
         valu(f'v_mov_b32 v{b}, v{a}', [f'v{b}'], [f'v{a}']),
         valu(f'v_permlane32_swap_b32 v{a}, v{b}', [f'v{a}', f'v{b}'], [f'v{a}', f'v{b}'], k='perm'),
         valu(f'v_max_f32 v{a}, v{a}, v{b}', [f'v{a}'], [f'v{a}', f'v{b}']),
         valu(f'v_mul_f32 v{b}, s{sNegC}, v{a}', [f'v{b}'], [f'v{a}'])]
    return r

def build_block():
    NG = 512
    gaps = [[] for _ in range(NG)]
    slots = [None] * NG
    def put(g, ins, prio):
        prev = g >= NG
        if prev:
            ins.prev = True; g -= NG
        gaps[g].append((prio, len(gaps[g]), ins))
    for j in range(16):
        b = 32 * j
        for t in range(8):
            slots[b + t] = mfma(S[0], ('a', AK + 4 * t), ('a', AQ[0] + 4 * t), c0=(t == 0))
            slots[b + 16 + t] = mfma(S[1], ('a', AK + 4 * t), ('a', (AN if (CFG['anq'] and j <= 7) else AQ[1]) + 4 * t), c0=(t == 0))
        for f in range(8):
            u, db = f >> 2, f & 3
            slots[b + 24 + f] = mfma(O[0] + 16 * db, ('a', AV + 4 * f), ('v', P[0] + 4 * u), c0=(j == 0 and u == 0))
            g = b + 40 + f
            m = mfma(O[1] + 16 * db, ('a', AV + 4 * f), ('v', P[1] + 4 * u), c0=(j == 0 and u == 0), prev=(g >= NG))
            slots[g % NG] = m
        for q in range(2):
            g0 = b + 9 + 16 * q; s = S[q]
            if j == 0:
                for x in maxpro(q): put(g0, x, 1)
            for r in range(16):
                put(g0 + r, valu(f'v_fma_f32 v{s+r}, v{s+r}, s{sC}, v{NMC[q]}', [f'v{s+r}'], [f'v{s+r}', f'v{NMC[q]}']), 2)
                put(g0 + r + 1, valu(f'v_exp_f32 v{s+r}, v{s+r}', [f'v{s+r}'], [f'v{s+r}'], k='trans'), 3)
                if j == 0 and r == 0:
                    put(g0 + r + 2, valu(f'v_mov_b32 v{L[q]}, v{s}', [f'v{L[q]}'], [f'v{s}']), 4)
                else:
                    put(g0 + r + 2, valu(f'v_add_f32 v{L[q]}, v{L[q]}, v{s+r}', [f'v{L[q]}'], [f'v{L[q]}', f'v{s+r}']), 4)
            for k in range(8):
                put(g0 + 3 + 2 * k, valu(f'v_cvt_pk_bf16_f32 v{P[q]+k}, v{s+2*k}, v{s+2*k+1}', [f'v{P[q]+k}'], [f'v{s+2*k}', f'v{s+2*k+1}']), 5)
        for k in range(16): put(b + 9 + k, vread(k >> 1, k & 1, j % 8), 0)
        for t in range(8): put(b + 24 + t, kread(t, (j + 1) % 8), 0)
        need = ('kv', (j + 1) % 16)
        if CFG['itst'] >= 0:
            put(b, I(f's_cmp_lg_u32 s{sB}, {CFG["itst"]}\ns_cbranch_scc1 L_is{j}\ns_memtime s[{60+2*j}:{61+2*j}]\nL_is{j}:', 'text'), -3)
        if CFG['kl']:
            if j % 2 == 0:
                put(b + CFG['doff'] - 1, I('WAITVM', 'waitvm', tag=('it', (j - 5) % 16)), 100)
                put(b + CFG['doff'] - 1, I('s_barrier', 'bar', [], R('a', AK + 28, 4)), 101)
            d0 = b + CFG['doff']; dsp = CFG['dsp']
            pre, l0, l1 = dma_kv(False, j + 7, ('it', j))
            for x in pre + [l0]: put(d0, x, 0)
            put(d0 + dsp, l1, 0)
            pre, l0, l1 = dma_kv(True, j + 6, ('it', j))
            for x in pre: put(d0 + dsp + 1, x, 0)
            put(d0 + 2 * dsp, l0, 0); put(d0 + 3 * dsp, l1, 0)
            grp = []
        elif CFG['bar2']:
            if j % 2 == 0:
                if CFG['barl']:
                    put(b + CFG['barg'], I('WAITVM', 'waitvm', tag=('kv', (j + 2) % 16)), 100); put(b + CFG['barg'], I('s_barrier', 'bar'), 101)
                else:
                    put(b + CFG['barg'], I('WAITVM', 'waitvm', tag=('kv', (j + 2) % 16)), -2); put(b + CFG['barg'], I('s_barrier', 'bar'), -1)
            grp = dma_tile(j + 6)
        else:
            put(b, I('WAITVM', 'waitvm', tag=need), -2); put(b, I('s_barrier', 'bar'), -1)
            grp = dma_tile(j + 7)
        for i, g in enumerate(grp):
            if CFG['m0e'] and i == 2:
                put(b + 2 + CFG['dsp'], g[0], 0); put(b + 1 + CFG['dsp'] * i, g[2], 0); continue
            for x in g: put(b + 1 + CFG['dsp'] * i, x, 0)
    QI1, QR1, QI0 = CFG['qi1'], CFG['qr1'], CFG['qi0']
    for i, g in enumerate(dma_q2(1, sXW) if CFG['qsp'] else dma_q(1, sXW)):
        for x in g: put(32 * QI1 + 17 + 8 * (i % 2) + 32 * (i // 2) if CFG['qsp'] else 32 * QI1 + 17 + 4 * (i % 4) + 32 * (i // 4), x, 0)
    put(32 * QR1 + 1, I('WAITVM', 'waitvm', tag=('q', 1)), -2)
    for t in range(8):
        put(32 * QR1 - (32 if CFG['anq'] else 8) + t, valu(f'v_add_u32 v{T+t}, s{sXW}, v{KA+t}', [f'v{T+t}'], [f'v{KA+t}']), 6)
        put(32 * QR1 + 1 + t, I(f'ds_read_b128 {rr("a",AN+4*t,4)}, v{T+t}', 'ds', R('a', AN + 4 * t, 4), [f'v{T+t}']), 0)
    put(32 * QI0 + 1, I('s_waitcnt lgkmcnt(0)', 'waitl0'), -2)
    for i, g in enumerate(dma_q2(0, sXW) if CFG['qsp'] else dma_q(0, sXW)):
        for x in g: put(32 * QI0 + 17 + 8 * (i % 2) + 32 * (i // 2) if CFG['qsp'] else 32 * QI0 + 17 + 4 * (i % 4) + 32 * (i // 4), x, 0)
    b = 32 * 15
    put(b + 8, I('WAITVM', 'waitvm', tag=('q', 0)), -2)
    for t in range(8):
        put(b + t, valu(f'v_add_u32 v{T+t}, s{sXW}, v{KA+t}', [f'v{T+t}'], [f'v{KA+t}']), 6)
        put(b + 8 + t, I(f'ds_read_b128 {rr("a",AQ[0]+4*t,4)}, v{T+t}', 'ds', R('a', AQ[0] + 4 * t, 4), [f'v{T+t}']), 0)
    sl = [32 * j + g for j in range(2, 7) for g in (0, 2, 3, 4, 6, 7, 8)]
    for r in range(32):
        put(sl[r] if CFG['anq'] else b + 25 + (r // 4) + (r // 4) // 2, valu(f'v_accvgpr_mov_b32 a{AQ[1]+r}, a{AN+r}', [f'a{AQ[1]+r}'], [f'a{AN+r}']), 6)
    b = 32 * 15
    for i, x in enumerate(lfin(0, sBit0, False)): put(b + 27 + (0, 0, 1, 2, 2, 3, 3, 3)[i], x, 7)
    for i, x in enumerate(lfin(1, sBit1, True)): put(NG + 11 + (0, 0, 1, 2, 2, 3, 3, 3)[i], x, 7)
    if CFG['wsp']:
        ins = oepi_all(0, T, True)
        for i, x in enumerate(ins): put(NG + CFG['e0a'] + i * CFG['e0n'] // len(ins), x, 8)
        ins = oepi_all(1, T1, True)
        for i, x in enumerate(ins): put(NG + CFG['o1s'] + i * CFG['e1n'] // len(ins), x, 8.5)
    for db in range(4 if not CFG['wsp'] else 0):
        ins = oepi(0, db, T, True); g0 = NG + 1 + 6 * db - (1 if db else 0); n = 6 if db else 5
        if db == 3: n = 5
        for i, x in enumerate(ins): put(g0 + i * n // len(ins), x, 8)
        ins = oepi(1, db, T1, True); g0 = NG + CFG['o1s'] + 4 * db
        for i, x in enumerate(ins): put(g0 + i * 4 // len(ins), x, 8.5)
    for q, g0 in ((0, NG + 23), (1, NG + 41)):
        rd, st = oflush(sOprev1 if q else sOprev, sO14 if q else sO4, True, ARB + 32 * q)
        for p in range(8):
            for x in rd[p]: put(g0 + (p // 4 if q == 0 else p // 2), x, 7.5)
        for p in range(8): put(max(NG + CFG['stoff'] + CFG['ssp'] * (8 * q + p), g0 + 4 + p), st[p], {0: 9, 1: -0.5, 2: 99}[CFG['stp']])
    out = []; marks = []
    for g in range(NG):
        if g % 32 == 0: marks.append(len(out))
        out.append(slots[g])
        items = sorted(gaps[g], key=lambda e: (e[0], e[1]))
        head = [x for p, _, x in items if p <= 0]
        streams = {}
        last = [x for p, _, x in items if p >= 99]
        for p, _, x in items:
            if 0 < p < 99:
                key = 'sm' if p <= 5 else p
                streams.setdefault(key, []).append(x)
        out += head
        sl = [streams[k] for k in streams]
        if not CFG['rr']:
            for l_ in sl: out += l_
            out += last
            continue
        while any(sl):
            best = None
            for l_ in sl:
                if not l_: continue
                x = l_[0]; st = 0
                for dist, p in enumerate(reversed(out[-4:])):
                    if p.k in ('valu', 'trans', 'perm') and (p.d & (x.u | x.d if x.k == 'perm' else x.u)):
                        lat = 3 if (x.k == 'perm' or p.k in ('trans', 'perm') or 'vcc' in p.d) else 2
                        st = max(st, lat - dist)
                    if p.k == 'salu' and x.k == 'salu' and p.t.startswith('s_cmp'): pass
                if out[-1].k == 'salu' and out[-1].t.startswith('s_cmp_lg_u64') and x.t.startswith('s_cselect'): st = -100
                key = (st, -len(l_))
                if best is None or key < best[0]: best = (key, l_)
            out.append(best[1].pop(0))
        out += last
    return out, marks

def add_waits(seq, passes):
    out = []; ds = []; vm = []
    for ins in seq:
        if ins.k == 'waitvm':
            n = None
            for i in range(len(vm) - 1, -1, -1):
                if vm[i] is not None and vm[i] == ins.tag:
                    n = len(vm) - 1 - i; break
            if n is None: n = 0
            w = I(f's_waitcnt vmcnt({min(n,63)})', 'wait', tag=('vm', ins, n), prev=ins.prev); out.append(w); continue
        if ins.k == 'waitl0':
            out.append(ins); ds = []; continue
        touched = ins.u | ins.d
        need = None
        for i, (pos, dst) in enumerate(ds):
            if dst & touched: need = i
        if need is not None:
            n = len(ds) - 1 - need
            recent = sum(1 for (pos, dst) in ds if pos > len(out) - CFG['lgk_window'])
            n = min(n, recent, 15)
            out.append(I(f's_waitcnt lgkmcnt({n})', 'wait', tag=('lgkm', ins, n), prev=ins.prev))
            ds = ds[len(ds) - n:] if n else []
        out.append(ins)
        if ins.k in ('ds', 'dsw'): ds.append((len(out), ins.d))
        if ins.k in ('vm', 'st'): vm.append(ins.tag)
        if ins.k == 'bar': pass
    return out

def states(x):
    if x.k == 'nop': return int(x.t.split()[1]) + 1
    return 1
def fix_hazards(seq, name):
    out = []; added = 0
    for ins in seq:
        if ins.k in ('label',): out.append(ins); continue
        req = 0; dist = 0
        for p in reversed(out):
            if dist >= 13: break
            if p.k == 'label': continue
            need = 0
            if p.k == 'mfma':
                if ins.k == 'mfma':
                    ab = ins.u
                    if p.d & ab: need = 12
                    elif (p.d & ins.c) and p.d != ins.c: need = 10
                    elif (p.d & ins.d) and not (p.d == ins.d and ins.c): need = 12
                elif ins.k in ('valu', 'trans', 'perm', 'st', 'ds', 'dsw', 'vm'):
                    if p.d & (ins.u | ins.d): need = 12
                    elif ins.k in ('valu', 'trans', 'perm') and (p.c & ins.d): need = 7
            elif p.k in ('valu', 'trans', 'perm'):
                if ins.k == 'mfma' and (p.d & (ins.u | ins.c)): need = 2
                if ins.k == 'perm' and (p.d & ins.u): need = max(need, 2)
                if p.k == 'trans' and ins.k in ('valu', 'perm', 'mfma', 'st', 'dsw') and (p.d & ins.u): need = max(need, 1)
                if p.k == 'perm' and (p.d & ins.u): need = max(need, 1)
                if ins.k == 'salu' and 'vcc' in p.d and 'vcc' in ins.u: need = max(need, 4)
            elif p.k in ('st', 'dsw'):
                if ins.k in ('valu', 'trans', 'perm') and (p.u & ins.d): need = 2
            elif p.k == 'salu' and 'm0' in p.t.split(',')[0] and ins.k == 'vm': need = 1
            req = max(req, need - dist)
            dist += states(p)
        if req > 0:
            out.append(I(f's_nop {req-1}', 'nop', prev=ins.prev)); added += 1
        out.append(ins)
    if added: print(f'; hazard nops added in {name}: {added}', file=sys.stderr)
    return out

def prologue_text(part=None):
    A = []; B = []; e = A.append
    e('s_cmp_ge_u32 s2, 256'); e('s_cbranch_scc1 L_end')
    e('s_load_dwordx4 s[4:7], s[0:1], 0'); e('s_load_dwordx4 s[48:51], s[0:1], 16')
    e('v_lshrrev_b32 v1, 6, v0'); e('v_and_b32 v0, 63, v0'); e('s_nop 0'); e(f'v_readfirstlane_b32 s{sWv}, v1')
    e('v_lshrrev_b32 v4, 4, v0'); e('v_and_b32 v6, 15, v0')
    for pp in range(4):
        e(f'v_add_u32 v7, {4*pp}, v4'); e('v_xor_b32 v7, v7, v6'); e('v_lshlrev_b32 v7, 4, v7')
        e(f'v_lshl_add_u32 v{QD+pp}, v4, 8, v7')
    e(f's_lshl_b32 s{sW2048}, s{sWv}, 11'); e(f's_lshl_b32 s{sW8192}, s{sWv}, 13'); e(f's_add_u32 s{sXW}, s{sW8192}, 131072')
    e(f's_and_b32 s{sX2}, s{sWv}, 1'); e(f's_add_u32 s{sX2}, s{sX2}, 6'); e(f's_lshl_b32 s{sX2}, s{sX2}, 13')
    e(f's_lshr_b32 s{sT}, s{sWv}, 1'); e(f's_lshl_b32 s{sT}, s{sT}, 16'); e(f's_add_u32 s{sX2}, s{sX2}, s{sT}')
    e(f's_lshl_b32 s{sT}, s{sWv}, 3'); e(f's_lshl_b32 s{sT3}, s{sWv}, 14')
    e(f'v_add_u32 v5, s{sT}, v4')
    e('v_and_b32 v7, 15, v5'); e('v_xor_b32 v7, v7, v6'); e('v_lshlrev_b32 v7, 4, v7'); e(f'v_lshl_add_u32 v{DK0}, v5, 8, v7')
    e('v_add_u32 v7, 4, v5'); e('v_and_b32 v7, 15, v7'); e('v_xor_b32 v7, v7, v6'); e('v_lshlrev_b32 v7, 4, v7'); e(f'v_lshl_add_u32 v{DK1}, v5, 8, v7')
    e('v_lshlrev_b32 v7, 2, v4'); e('v_xor_b32 v7, v7, v6'); e('v_lshlrev_b32 v7, 4, v7'); e(f'v_lshl_add_u32 v{DV}, v5, 8, v7')
    if CFG['pairmode'] == 1:
        e('s_lshr_b32 s3, s2, 4'); e('s_lshl_b32 s3, s3, 3'); e(f's_and_b32 s{sT}, s2, 7'); e(f's_add_u32 s3, s3, s{sT}')
        e(f's_lshr_b32 s{sHalf}, s2, 3'); e(f's_and_b32 s{sHalf}, s{sHalf}, 1')
    else:
        e('s_lshr_b32 s3, s2, 1'); e(f's_and_b32 s{sHalf}, s2, 1')
    if CFG['xor']: e(f's_mul_i32 s{sRot}, s{sHalf}, {CFG["xor"]*8192}')
    e(f's_lshl_b32 s{sHalf}, s{sHalf}, 16')
    e(f's_lshl_b32 s{sHead0}, s3, 17')
    if CFG['rot']:
        e(f's_lshr_b32 s{sRot}, s3, {CFG["rot"]-1}'); e(f's_and_b32 s{sRot}, s{sRot}, 15'); e(f's_lshl_b32 s{sRot}, s{sRot}, 13')
    e(f's_mov_b32 s{sHead}, s{sHead0}'); e(f's_add_u32 s{sHeadN}, s{sHead0}, 0x1000000')
    e(f's_add_u32 s{sQW}, s{sHead0}, s{sHalf}'); e(f's_add_u32 s{sQW}, s{sQW}, s{sT3}')
    srd = lambda srd, lo: [f's_mov_b32 s{srd}, s{lo}', f's_and_b32 s{srd+1}, s{lo+1}, 0xffff', f's_mov_b32 s{srd+2}, 0x4000000', f's_mov_b32 s{srd+3}, 0x20000']
    for r_, lo in ((sQ, 4), (sK, 6), (sV, 48), (sO, 50)):
        e(f's_mov_b32 s{r_+2}, 0x4000000'); e(f's_mov_b32 s{r_+3}, 0x20000')
    e('s_waitcnt lgkmcnt(0)')
    for r_, lo in ((sQ, 4), (sK, 6), (sV, 48), (sO, 50)):
        e(f's_mov_b32 s{r_}, s{lo}'); e(f's_and_b32 s{r_+1}, s{lo+1}, 0xffff')
    e = B.append if CFG['early'] else A.append
    e('v_and_b32 v2, 31, v0'); e('v_lshrrev_b32 v3, 5, v0')
    e('v_and_b32 v4, 15, v2')
    for t in range(8):
        e(f'v_add_u32 v5, {2*t}, v3'); e('v_xor_b32 v5, v5, v4'); e('v_lshlrev_b32 v5, 4, v5')
        e(f'v_lshl_add_u32 v{KA+t}, v2, 8, v5')
    if CFG['hsw']:
        e('v_bfe_u32 v6, v2, 3, 1'); e('v_xor_b32 v5, v6, v3'); e('v_lshlrev_b32 v6, 8, v2'); e('v_lshl_add_u32 v6, v5, 3, v6'); e(f'v_add_u32 v6, s{sXW}, v6')
    else:
        e('v_lshlrev_b32 v6, 8, v2'); e('v_lshl_add_u32 v6, v3, 3, v6'); e(f'v_add_u32 v6, s{sXW}, v6')
    for c in range(16):
        e(f'v_xor_b32 v5, {c}, v4'); e(f'v_lshl_add_u32 v{WA[c]}, v5, 4, v6')
    e('v_bfe_u32 v4, v0, 2, 2')
    e('v_lshl_add_u32 v5, v3, 2, v4')
    e('v_lshlrev_b32 v5, 8, v5')
    e('v_bfe_u32 v6, v0, 4, 1'); e('v_lshl_add_u32 v5, v6, 5, v5')
    e('v_and_b32 v6, 3, v0'); e('v_lshl_add_u32 v5, v6, 3, v5')
    for db in range(4):
        e(f'v_xor_b32 v6, {db}, v4'); e('v_lshl_add_u32 v6, v6, 6, v5')
        e(f'v_add_u32 v{VB+db}, 0x10000, v6')
    e('v_lshlrev_b32 v7, 4, v0'); e(f'v_add_u32 v{VST}, s{sT3}, v7')
    for pp in range(4): e(f'v_add_u32 v{XR+pp}, s{sXW}, v{QD+pp}')
    e(f's_mov_b32 s{sO4}, {OOB:#x}'); e(f's_mov_b32 s{sO14}, {OOB:#x}')
    e(f's_mov_b32 s{sOprev}, {OOB:#x}'); e(f's_mov_b32 s{sOprev1}, {OOB:#x}')
    e(f's_mov_b32 s{sB}, 0'); e(f's_mov_b32 s{sBad}, 0'); e(f's_mov_b32 s{sBit0}, 1'); e(f's_mov_b32 s{sBit1}, 0')
    e(f's_mov_b32 s{sC}, {fbits(cval):#x}'); e(f's_mov_b32 s{sNegC}, {fbits(-cval):#x}')
    thr = -1.0 if CFG['force_slow'] else 2.0 ** CFG['thr_log2']
    e(f's_mov_b32 s{sThr}, {fbits(thr):#x}')
    return [I(t, 'text') for t in (B if part == 'B' else A)]

def prologue_seq(blk0):
    seq = []
    def half(isv, t, tag):
        pre, l0, l1 = dma_kv(isv, t, tag); return pre + [l0, l1]
    ktag = lambda t: ('it', (t - 7) % 16)
    if CFG['kl']:
        seq += [y for g in dma_q(0, sXW) for y in g] + half(False, 0, ('k0',))
        for g in dma_q(1, sX2): seq += g
        seq += half(True, 0, ('kv', 0))
        for tl in range(1, 6): seq += half(False, tl, ktag(tl)) + half(True, tl, ('pv', tl))
    if not CFG['kl']:
        t0 = dma_tile(0)
        for x in [y for g in dma_q(0, sXW) for y in g] + t0[0] + t0[1]: seq.append(x)
        t0[1][-1].tag = ('k0',)
        for g in dma_q(1, sX2): seq += g
        seq += [salu(f's_add_u32 s{sT}, s{sHead}, 0')] if not CFG['xor'] else [salu(f's_add_u32 s{sT}, s{sHead}, s{sRot}')]
        seq += t0[2] + t0[3]
        for tl in range(1, 6):
            gs = dma_tile(tl)
            if tl == 1: gs[1][-1].tag = ('k1',)
            for g in gs: seq += g
    seq.append(salu(f's_add_u32 s{sQW}, s{sHeadN}, s{sHalf}')); seq.append(salu(f's_add_u32 s{sQW}, s{sQW}, s{sT3}'))
    seq += prologue_text('B')
    for t in range(8):
        seq.append(valu(f'v_add_u32 v{T+t}, s{sXW}, v{KA+t}', [f'v{T+t}'], [f'v{KA+t}']))
        seq.append(valu(f'v_add_u32 v{T+8+t}, s{sX2}, v{KA+t}', [f'v{T+8+t}'], [f'v{KA+t}']))
    seq.append(I('WAITVM', 'waitvm', tag=('k0',))); seq.append(I('s_barrier', 'bar'))
    for t in range(8):
        seq.append(I(f'ds_read_b128 {rr("a",AQ[0]+4*t,4)}, v{T+t}', 'ds', R('a', AQ[0] + 4 * t, 4), [f'v{T+t}']))
        seq.append(kread(t, 0))
    g = -1
    for x in blk0:
        if x.k == 'mfma':
            g += 1
            if g == 24:
                seq.append(I('WAITVM', 'waitvm', tag=(ktag(2) if CFG['kl'] else ('k1',) if CFG['k1s'] else ('kv', 2 if CFG['bar2'] else 1)))); seq.append(I('s_waitcnt lgkmcnt(0)', 'waitl0')); seq.append(I('s_barrier', 'bar'))
                if CFG['kl']: seq += half(False, 6, ktag(6)) + half(True, 6, ('pv', 6)) + half(False, 7, ktag(7))
                for gg in ([] if CFG['kl'] else dma_tile(6) + ([] if CFG['bar2'] else dma_tile(7))): seq += gg
        if x.prev or x.k in ('waitvm', 'bar', 'vm', 'text') or (x.k in ('salu', 'nop') and not x.prev): continue
        seq.append(x)
        if x.k == 'mfma' and g == 7:
            seq.append(I('WAITVM', 'waitvm', tag=('kv', 0))); seq.append(I('s_barrier', 'bar'))
            for t in range(8):
                a1 = AN if CFG['anq'] else AQ[1]
                seq.append(I(f'ds_read_b128 {rr("a",a1+4*t,4)}, v{T+8+t}', 'ds', R('a', a1 + 4 * t, 4), [f'v{T+8+t}']))
    if CFG['k1s']:
        seq.append(I('WAITVM', 'waitvm', tag=('kv', 2 if CFG['bar2'] else 1))); seq.append(I('s_barrier', 'bar'))
    return seq

def stamp(i):
    return [f's_memtime s[{60+2*i}:{61+2*i}]', 's_waitcnt lgkmcnt(0)'] if CFG['stamps'] else []
def blockend():
    return [salu(f's_add_u32 s{sOprev}, s{sHead}, s{sHalf}'), salu(f's_add_u32 s{sOprev1}, s{sOprev}, 8192'),
            salu(f's_mov_b32 s{sHead}, s{sHeadN}'),
            salu(f's_add_u32 s{sB}, s{sB}, 1'),
            salu(f's_add_u32 s{sHeadN}, s{sHeadN}, 0x1000000'),
            salu(f's_cmp_ge_u32 s{sB}, 3'), salu(f's_cselect_b32 s{sHeadN}, {OOB:#x}, s{sHeadN}'),
            salu(f's_add_u32 s{sQW}, s{sHeadN}, s{sHalf}'), salu(f's_add_u32 s{sQW}, s{sQW}, s{sT3}'),
            salu(f's_add_u32 s{sO4}, s{sOprev}, 4096'), salu(f's_add_u32 s{sO14}, s{sOprev1}, 4096'),
            salu(f's_lshl_b32 s{sT2}, s{sB}, 1'),
            salu(f's_lshl_b32 s{sBit0}, 1, s{sT2}'), salu(f's_lshr_b32 s{sBit1}, s{sBit0}, 1'),
            salu(f's_cmp_lt_u32 s{sB}, 4')]

def slow_text():
    A = []; e = A.append
    if CFG['fx']:
        e(f's_cmp_eq_u32 s{sBad}, 0'); e('s_cbranch_scc1 L_end'); e('s_waitcnt vmcnt(0) lgkmcnt(0)'); e('s_barrier')
    else:
        e('s_waitcnt vmcnt(0) lgkmcnt(0)'); e('s_barrier')
        e(f's_cmp_eq_u32 s{sBad}, 0'); e('s_cbranch_scc1 L_end')
    G = T; M = MT[0]; N = NMC[0]; Ls = L[0]; s = S[0]; VT = T + 4
    e(f'v_subrev_u32 v{T+8}, s{sW2048}, v{DV}')
    for db in range(4): e(f'v_add_u32 v{VT+db}, s{sW8192}, v{VB+db}')
    e(f'v_mbcnt_lo_u32_b32 v{G}, -1, 0'); e(f'v_mbcnt_hi_u32_b32 v{G}, -1, v{G}')
    e(f'v_lshrrev_b32 v{G+1}, 5, v{G}'); e(f'v_and_b32 v{G}, 31, v{G}'); e(f'v_lshlrev_b32 v{G}, 8, v{G}'); e(f'v_lshl_add_u32 v{G}, v{G+1}, 4, v{G}')
    e(f's_mov_b32 s{sIdx}, 0')
    e('L_slow_loop:')
    e(f's_lshr_b32 s{sT}, s{sBad}, s{sIdx}'); e(f's_and_b32 s{sT}, s{sT}, 1'); e(f's_cmp_eq_u32 s{sT}, 0'); e('s_cbranch_scc1 L_slow_next')
    e(f's_lshr_b32 s{sT}, s{sIdx}, 1'); e(f's_lshl_b32 s{sT}, s{sT}, 24'); e(f's_add_u32 s{sHead}, s{sHead0}, s{sT}')
    e(f's_and_b32 s{sT}, s{sIdx}, 1'); e(f's_lshl_b32 s{sT}, s{sT}, 13'); e(f's_add_u32 s{sOcur}, s{sHead}, s{sHalf}'); e(f's_add_u32 s{sOcur}, s{sOcur}, s{sT}')
    e(f's_lshl_b32 s{sT}, s{sWv}, 14'); e(f's_add_u32 s{sT}, s{sT}, s{sOcur}')
    for t in range(8): e(f'buffer_load_dwordx4 {rr("a",AQ[0]+4*t,4)}, v{G}, s[{sQ}:{sQ+3}], s{sT} offen offset:{32*t}')
    e(f'v_mov_b32 v{M}, 0xff800000')
    def ktile():
        e(f's_lshl_b32 s{sT}, s{sTile}, 13'); e(f's_add_u32 s{sT}, s{sT}, s{sHead}')
        for t in range(8): e(f'buffer_load_dwordx4 {rr("a",AK+4*t,4)}, v{G}, s[{sK}:{sK+3}], s{sT} offen offset:{32*t}')
    def qk():
        e('s_waitcnt vmcnt(0)')
        for t in range(8): e(mfma(s, ('a', AK + 4 * t), ('a', AQ[0] + 4 * t), c0=(t == 0)).t)
        e('s_nop 15')
    e(f's_mov_b32 s{sTile}, 0'); e('L_slow_p1:')
    ktile(); qk()
    for r in range(0, 16, 2): e(f'v_max3_f32 v{M}, v{M}, v{s+r}, v{s+r+1}')
    e(f's_add_u32 s{sTile}, s{sTile}, 1'); e(f's_cmp_lt_u32 s{sTile}, 16'); e('s_cbranch_scc1 L_slow_p1')
    e(f'v_mov_b32 v{N}, v{M}'); e('s_nop 1'); e(f'v_permlane32_swap_b32 v{M}, v{N}'); e('s_nop 1'); e(f'v_max_f32 v{M}, v{M}, v{N}')
    e(f'v_mul_f32 v{N}, s{sNegC}, v{M}'); e(f'v_mov_b32 v{Ls}, 0')
    for r in range(64): e(f'v_mov_b32 v{O[0]+r}, 0')
    e(f's_mov_b32 s{sTile}, 0'); e('L_slow_p2:')
    ktile()
    e(f's_add_u32 m0, s{sW8192}, 65536'); e('s_nop 0')
    for p in range(4): e(f'buffer_load_dwordx4 v{T+8}, s[{sV}:{sV+3}], s{sT} offen offset:{1024*p} lds')
    e(f's_add_u32 m0, s{sW8192}, {65536+4096}'); e(f's_add_u32 s{sT}, s{sT}, 4096')
    for p in range(4): e(f'buffer_load_dwordx4 v{T+8}, s[{sV}:{sV+3}], s{sT} offen offset:{1024*p} lds')
    qk()
    for r in range(16): e(f'v_fma_f32 v{s+r}, v{s+r}, s{sC}, v{N}')
    for r in range(16): e(f'v_exp_f32 v{s+r}, v{s+r}')
    e('s_nop 0')
    for r in range(16): e(f'v_add_f32 v{Ls}, v{Ls}, v{s+r}')
    for k in range(8): e(f'v_cvt_pk_bf16_f32 v{P[0]+k}, v{s+2*k}, v{s+2*k+1}')
    for f in range(8):
        for sec in range(2):
            e(f'ds_read_b64_tr_b16 {rr("a",AV+4*f+2*sec,2)}, v{VT+(f&3)} offset:{(f>>2)*4096+sec*2048}')
    e('s_waitcnt lgkmcnt(0)')
    for f in range(8): e(mfma(O[0] + 16 * (f & 3), ('a', AV + 4 * f), ('v', P[0] + 4 * (f >> 2))).t)
    e(f's_add_u32 s{sTile}, s{sTile}, 1'); e(f's_cmp_lt_u32 s{sTile}, 16'); e('s_cbranch_scc1 L_slow_p2')
    e('s_nop 15')
    e(f'v_mov_b32 v{M}, v{Ls}'); e('s_nop 1'); e(f'v_permlane32_swap_b32 v{Ls}, v{M}'); e('s_nop 1'); e(f'v_add_f32 v{Ls}, v{Ls}, v{M}')
    e(f'v_rcp_f32 v{INV[0]}, v{Ls}'); e('s_nop 1')
    sv = CFG.get('_x')
    seq = []
    global T_save
    for db in range(4): seq += oepi_slow(db)
    e(f's_add_u32 s{sO4}, s{sOcur}, 4096')
    rd, st = oflush(sOcur, sO4, False, ARB)
    seq += [x for g in rd for x in g] + [I('s_waitcnt lgkmcnt(0)', 'wait')] + st
    for x in fix_hazards(seq, 'slow-epi'): e(x.t)
    e('s_waitcnt vmcnt(0)')
    e('L_slow_next:')
    e(f's_add_u32 s{sIdx}, s{sIdx}, 1'); e(f's_cmp_lt_u32 s{sIdx}, 8'); e('s_cbranch_scc1 L_slow_loop')
    return [I(t, 'text') for t in A]
def oepi_slow(db): return oepi(0, db, S[1], False)

def main():
    blk, marks = build_block()
    def filt(l):
        if CFG['nodma']: l = [x for x in l if x.k not in ('vm', 'st')]
        if CFG['novalu'] == 1: l = [x for x in l if x.k not in ('valu', 'trans', 'perm')]
        if CFG['nomfma']: l = [x for x in l if x.k != 'mfma']
        if CFG['nost']: l = [x for x in l if x.k != 'st']
        if CFG['nolds']: l = [x for x in l if x.k not in ('ds', 'dsw')]
        return l
    it0 = blk[:marks[1]]; rest = filt(blk[marks[1]:]);
    blk2, _ = build_block()
    pro = prologue_seq(blk2[:marks[1]])
    it0 = filt(it0)
    blk = it0 + rest
    be = blockend()
    entry = I('L_it1:', 'label')
    full = add_waits(pro + rest + be + it0 + rest + be + it0 + rest + be, 1)
    wm = {}
    for x in full:
        if x.k == 'wait' and x.tag:
            key = (x.tag[0], id(x.tag[1])); wm[key] = min(wm.get(key, 99), x.tag[2])
    def apply(l):
        o = []
        for x in l:
            if x.k == 'waitvm':
                o.append(I(f's_waitcnt vmcnt({min(wm[("vm", id(x))], 63)})', 'wait', prev=x.prev)); continue
            if ('lgkm', id(x)) in wm: o.append(I(f's_waitcnt lgkmcnt({wm[("lgkm", id(x))]})', 'wait', prev=x.prev))
            o.append(x)
        return o
    pro_w = apply(pro); it0_w = apply(it0); rest_w = apply(rest + be)
    body = it0_w + rest_w
    mk = I('', 'label')
    a1 = fix_hazards(pro_w + [mk] + rest_w[:40], 'pro'); pro_f = a1[:a1.index(mk)]; r_a = a1[a1.index(mk) + 1:]
    mk2 = I('', 'label'); mk3 = I('', 'label')
    a2 = fix_hazards(rest_w[-60:] + [mk2] + it0_w + [mk3] + rest_w, 'steady')
    it0_f = a2[a2.index(mk2) + 1:a2.index(mk3)]; rest_f = a2[a2.index(mk3) + 1:]
    chk = fix_hazards(pro_f[-40:] + rest_f[:60], 'entrycheck'); assert len(chk) == 100, len(chk)
    body_f = it0_f + [entry] + rest_f
    tail = [x for x in blk if x.prev and x.k not in ('waitvm',)]
    if CFG['stt'] >= 0:
        def rs(x):
            t = x.t[:len(x.t) - len(LDF[CFG['stf']])] + LDF[CFG['stt']]
            return I(t, x.k, x.d, x.u, x.tag, x.prev, x.c)
        tail = [rs(x) if x.k == 'st' else x for x in tail]
    if CFG['tord']:
        sts = [x for x in tail if x.k == 'st']; oth = [x for x in tail if x.k != 'st']
        arb0 = set(R('a', ARB, 32))
        last0 = max(i for i, x in enumerate(oth) if x.k == 'ds' and (x.d & arb0))
        k = last0 + 1 + CFG['tord']
        tail = oth[:k] + sts[:8] + oth[k:] + sts[8:]
    tail_w = add_waits(tail, 1)
    mark3 = I('', 'label')
    t2 = fix_hazards(body[-60:] + [mark3] + [I('s_waitcnt lgkmcnt(0)', 'wait')] + tail_w, 'tail')
    tail_f = t2[t2.index(mark3) + 1:]
    out = []
    hdr = open('standalone__gqa_softmax__near_ridge.s.ref').read().split('\n')
    name = 'standalone__gqa_softmax__near_ridge_kernel'
    for ln in hdr:
        if ln.startswith('; @launch'): out.append('; @launch grid=(256,1,1) block=(256,1,1) lds=163840')
        elif ln.startswith(';'): out.append(ln)
        else: break
    out += ['.amdgcn_target "amdgcn-amd-amdhsa--gfx950"', '.text', f'.globl {name}', '.p2align 8', f'.type {name},@function', f'{name}:']
    out += stamp(0) + (['s_memrealtime s[80:81]'] if CFG['stamps'] else [])
    out += [x.t for x in prologue_text()]
    out += [x.t for x in pro_f]
    out.append('s_nop 0' if CFG.get('pad') else '.p2align 3' if False else '')
    out += stamp(1)
    out.append('s_branch L_it1')
    out.append('L_loop:')
    out += [x.t for x in body_f]
    if CFG['stamps']:
        out += ['s_cselect_b32 s3, 1, 0', 's_memtime s[84:85]', 's_waitcnt lgkmcnt(0)']
        for b in range(4): out += [f's_cmp_eq_u32 s{sB}, {b+1}', f's_cselect_b32 s{64+2*b}, s84, s{64+2*b}']
        out += ['s_cmp_eq_u32 s3, 1']
    out.append('s_cbranch_scc1 L_loop')
    out += [x.t for x in tail_f]
    if CFG['stamps']:
        out += ['s_waitcnt vmcnt(0)'] + stamp(6) + ['s_memrealtime s[82:83]', 's_load_dwordx2 s[86:87], s[0:1], 32', 's_waitcnt lgkmcnt(0)',
                f's_cmp_lg_u32 s2, {CFG["stampwg"]}', 's_cbranch_scc1 L_nost', f's_cmp_lg_u32 s{sWv}, 0', 's_cbranch_scc1 L_nost',
                's_mov_b32 s88, s86', 's_and_b32 s89, s87, 0xffff', 's_mov_b32 s90, 256', 's_mov_b32 s91, 0x20000', 'v_mov_b32 v1, 0']
        for i, r in enumerate([62, 64, 66, 68, 70, 72]):
            out += [f's_sub_u32 s3, s{r}, s60', 'v_mov_b32 v2, s3', f'buffer_store_dword v2, v1, s[88:91], 0 offen offset:{4*i}']
        out += ['s_sub_u32 s3, s82, s80', 'v_mov_b32 v2, s3', 'buffer_store_dword v2, v1, s[88:91], 0 offen offset:24', 's_waitcnt vmcnt(0)', 'L_nost:']
    if CFG['itst'] >= 0 and CFG['wgst']:
        out += ['s_waitcnt vmcnt(0) lgkmcnt(0)', 's_memtime s[92:93]', 's_waitcnt lgkmcnt(0)']
    elif CFG['itst'] >= 0:
        out += ['s_waitcnt vmcnt(0) lgkmcnt(0)', 's_memtime s[92:93]', 's_load_dwordx2 s[96:97], s[0:1], 32', 's_waitcnt lgkmcnt(0)',
                f's_cmp_lg_u32 s2, {CFG["stampwg"]}', 's_cbranch_scc1 L_nost', f's_cmp_lg_u32 s{sWv}, 0', 's_cbranch_scc1 L_nost',
                's_and_b32 s97, s97, 0xffff', 's_mov_b32 s98, 256', 's_mov_b32 s99, 0x20000', 'v_mov_b32 v1, 0']
        for i in range(16):
            nxt = 62 + 2 * i
            out += [f's_sub_u32 s3, s{nxt}, s{60+2*i}', 'v_mov_b32 v2, s3', f'buffer_store_dword v2, v1, s[96:99], 0 offen offset:{4*i}']
        out += ['s_waitcnt vmcnt(0)', 'L_nost:']
    if CFG['wgst'] and CFG['itst'] >= 0:
        out += ['s_load_dwordx2 s[96:97], s[0:1], 40', 's_waitcnt lgkmcnt(0)', f's_cmp_lg_u32 s{sWv}, 0', 's_cbranch_scc1 L_nost3',
                's_and_b32 s97, s97, 0xffff', 's_mov_b32 s98, 0x10000', 's_mov_b32 s99, 0x20000', 's_lshl_b32 s3, s2, 6', 's_add_u32 s3, s3, 16384', 'v_mov_b32 v1, s3']
        for i in range(16):
            out += [f's_sub_u32 s3, s{62+2*i}, s{60+2*i}', 'v_mov_b32 v2, s3', f'buffer_store_dword v2, v1, s[96:99], 0 offen offset:{4*i}']
        out += ['s_waitcnt vmcnt(0)', 'L_nost3:']
    elif CFG['wgst']:
        out += ['s_load_dwordx2 s[88:89], s[0:1], 40', 's_waitcnt lgkmcnt(0)', f's_cmp_lg_u32 s{sWv}, 0', 's_cbranch_scc1 L_nost2',
                's_and_b32 s89, s89, 0xffff', 's_mov_b32 s90, 0x10000', 's_mov_b32 s91, 0x20000', 's_lshl_b32 s3, s2, 6', 'v_mov_b32 v1, s3']
        vals = ['s80', 's82', ('s72', 's60'), ('s62', 's60'), ('s64', 's60'), ('s66', 's60'), ('s68', 's60'), ('s70', 's60'), ('s72', 's60')]
        for i, r in enumerate(vals):
            out += ([f's_sub_u32 s3, {r[0]}, {r[1]}', 'v_mov_b32 v2, s3'] if isinstance(r, tuple) else [f'v_mov_b32 v2, {r}']) + [f'buffer_store_dword v2, v1, s[88:91], 0 offen offset:{4*i}']
        out += ['s_waitcnt vmcnt(0)', 'L_nost2:']
    out += [x.t for x in slow_text()]
    out += ['L_end:', 's_endpgm', '.section .rodata,"a"', '.p2align 6', f'.amdhsa_kernel {name}',
            '  .amdhsa_next_free_vgpr 512', '  .amdhsa_next_free_sgpr 102', '  .amdhsa_accum_offset 256',
            '  .amdhsa_group_segment_fixed_size 0', '  .amdhsa_kernarg_size 48', '  .amdhsa_user_sgpr_count 2',
            '  .amdhsa_user_sgpr_kernarg_segment_ptr 1', '  .amdhsa_system_sgpr_workgroup_id_x 1', '.end_amdhsa_kernel']
    open(sys.argv[1], 'w').write('\n'.join(o for o in out if o != '') + '\n')
    n = lambda k: sum(1 for x in body_f if x.k == k)
    print('body instrs', len(body_f), {k: n(k) for k in ('mfma', 'valu', 'trans', 'perm', 'ds', 'vm', 'st', 'salu', 'wait', 'nop', 'bar')}, file=sys.stderr)
main()
```

```python
import sys, struct, math
CFG = dict(ldq=-1, pdl=6, pdw=0, kl=0, doff=3, stt=-1, barg=0, barl=0, qsp=0, m0e=0, fx=0, anq=0, k1s=0, wsp=0, e0a=1, e0n=22, e1n=17, bar2=0, hsw=0, pkm=0, early=0, tord=0, stp=0, stv=0, stoff=27, dsp=4, ssp=4, o1s=24, peel=1, rr=1, m16=0, wgst=0, qi1=2, qr1=8, qi0=9, xor=0, ldf=0, stf=0, nomfma=0, nost=0, itst=-1, nodma=0, novalu=0, nolds=0, rot=0, stamps=0, stampwg=0, force_slow=0, thr_log2=30, lgk_window=18, pairmode=1)
for a in sys.argv[2:]:
    k, v = a.split('='); CFG[k] = int(v)

LDF = ['', ' nt', ' sc1', ' sc0 sc1', ' sc0', ' sc0 sc1 nt', ' sc1 nt']
class I:
    __slots__ = ('t', 'k', 'd', 'u', 'tag', 'prev', 'c')
    def __init__(s, t, k, d=(), u=(), tag=None, prev=False, c=()):
        s.t = t; s.k = k; s.d = set(d); s.u = set(u); s.tag = tag; s.prev = prev; s.c = set(c)
def R(p, a, n=1): return [f'{p}{a+i}' for i in range(n)]
def rr(p, a, n): return f'{p}[{a}:{a+n-1}]' if n > 1 else f'{p}{a}'

O = [0, 64]; S = [128, 144]; P = [160, 168]
KA = 176; VB = 192; XR = 196
WA = [184,185,186,187,188,189,190,191,228,229,230,231,252,253,254,255]
T1 = 236
DK0 = 200; DK1 = 201; DV = 202; VST = 203; QD = 232
L = [204, 205]; INV = [206, 207]; NMC = [208, 209]; MT = [210, 211]
T = 212
AQ = [0, 32]; AK = 64; AV = 96; AN = 128; ARB = 160
sQ, sK, sV, sO = 8, 12, 16, 20
sW2048 = 24; sW8192 = 25; sHead = 26; sHeadN = 27; sQN = 28; sOprev = 29; sT = 30; sB = 31
sC = 32; sNegC = 33; sBad = 34; sBit0 = 35; sBit1 = 36; sT2 = 37; sHalf = 38; sOprev1 = 39; sThr = 40
sHead0 = 41; sIdx = 42; sTile = 43; sT3 = 44; sOcur = 45; sWv = 46; sRot = 47; sXW = 52; sQW = 53; sO4 = 54; sX2 = 55; sO14 = 56
OOB = 0x40000000
cval = math.log2(math.e) / math.sqrt(128.0)
def fbits(x): return struct.unpack('<I', struct.pack('<f', x))[0]

def mfma(dst, a, b, c0=False, prev=False):
    ctext = '0' if c0 else rr('v', dst, 16)
    if CFG['m16']:
        c1 = '0' if c0 else rr('v', dst, 4); c2 = '0' if c0 else rr('v', dst + 8, 4)
        return I(f'v_mfma_f32_16x16x32_bf16 {rr("v",dst,4)}, {rr(a[0],a[1],4)}, {rr(b[0],b[1],4)}, {c1}\nv_mfma_f32_16x16x32_bf16 {rr("v",dst+8,4)}, {rr(a[0],a[1],4)}, {rr(b[0],b[1],4)}, {c2}', 'mfma',
             R('v', dst, 16), R(a[0], a[1], 4) + R(b[0], b[1], 4), prev=prev, c=([] if c0 else R('v', dst, 16)))
    return I(f'v_mfma_f32_32x32x16_bf16 {rr("v",dst,16)}, {rr(a[0],a[1],4)}, {rr(b[0],b[1],4)}, {ctext}', 'mfma',
             R('v', dst, 16), R(a[0], a[1], 4) + R(b[0], b[1], 4), prev=prev, c=([] if c0 else R('v', dst, 16)))
def valu(t, d, u, prev=False, k='valu'): return I(t, k, d, u, prev=prev)
def salu(t, prev=False): return I(t, 'salu', prev=prev)

def kaddr(pos): return (KA, pos * 8192)
def vaddr(pos): return (VB, pos * 8192)
def kread(t, pos):
    b, o = kaddr(pos)
    return I(f'ds_read_b128 {rr("a",AK+4*t,4)}, v{b+t} offset:{o}', 'ds', R('a', AK + 4 * t, 4), [f'v{b+t}'])
def vread(f, sec, pos):
    u, db = f >> 2, f & 3
    b, o = vaddr(pos)
    return I(f'ds_read_b64_tr_b16 {rr("a",AV+4*f+2*sec,2)}, v{b+db} offset:{o+u*4096+sec*2048}', 'ds',
             R('a', AV + 4 * f + 2 * sec, 2), [f'v{b+db}'])
def ld(v, srd, off, tag): return I(f'buffer_load_dwordx4 v{v}, s[{srd}:{srd+3}], s{sT} offen offset:{off}{LDF[CFG["ldq"] if (srd == sQ and CFG["ldq"] >= 0) else CFG["ldf"]]} lds', 'vm', [], [f'v{v}'], tag=tag)
def dma_tile(tile):
    nb = tile >= 16; tt = tile % 16; pos = tt % 8
    kb = pos * 8192; vb = 65536 + pos * 8192
    src = sHeadN if nb else sHead
    tag = ('kv', tt)
    if CFG['xor']: pre = [salu(f's_xor_b32 s{sT}, s{sRot}, {tt*8192}'), salu(f's_add_u32 m0, s{sW2048}, {kb}'), salu(f's_add_u32 s{sT}, s{sT}, s{src}')]
    else: pre = [salu(f's_add_u32 m0, s{sW2048}, {kb}'), salu(f's_add_u32 s{sT}, s{src}, {tt*8192}')]
    return [pre + [ld(DK0, sK, 0, tag)], [ld(DK1, sK, 1024, tag)],
            [salu(f's_add_u32 m0, s{sW2048}, {vb}'), I('s_nop 0', 'nop'), ld(DV, sV, 0, tag)], [ld(DV, sV, 1024, tag)]]
def dma_kv(isv, tile, tag):
    nb = tile >= 16; tt = tile % 16; pos = tt % 8
    src = sHeadN if nb else sHead
    pre = [salu(f's_add_u32 m0, s{sW2048}, {(65536 if isv else 0) + pos*8192}'), salu(f's_add_u32 s{sT}, s{src}, {tt*8192}')]
    if isv: return pre, ld(DV, sV, 0, tag), ld(DV, sV, 1024, tag)
    return pre, ld(DK0, sK, 0, tag), ld(DK1, sK, 1024, tag)
def dma_q(qb, ldsbase):
    tag = ('q', qb); g = []
    for p in range(8):
        pre = []
        if p % 4 == 0:
            pre = [salu(f's_add_u32 m0, s{ldsbase}, {(p>>2)*4096}'), salu(f's_add_u32 s{sT}, s{sQW}, {qb*8192+(p>>2)*4096}')]
        g.append(pre + [ld(QD + (p & 3), sQ, (p & 3) * 1024, tag)])
    return g

def dma_q2(qb, ldsbase):
    tag = ('q', qb); g = []
    for p in range(8):
        pre = []
        if p % 2 == 0:
            pre = [salu(f's_add_u32 m0, s{ldsbase}, {(p>>2)*4096}'), salu(f's_add_u32 s{sT}, s{sQW}, {qb*8192+(p>>2)*4096}')]
        g.append(pre + [ld(QD + (p & 3), sQ, (p & 3) * 1024, tag)])
    return g
def lfin(q, bit, prev):
    l, inv, t = L[q], INV[q], MT[q]
    return [valu(f'v_mov_b32 v{t}, v{l}', [f'v{t}'], [f'v{l}'], prev),
            valu(f'v_permlane32_swap_b32 v{l}, v{t}', [f'v{l}', f'v{t}'], [f'v{l}', f'v{t}'], prev, 'perm'),
            valu(f'v_add_f32 v{l}, v{l}, v{t}', [f'v{l}'], [f'v{l}', f'v{t}'], prev),
            valu(f'v_rcp_f32 v{inv}, v{l}', [f'v{inv}'], [f'v{l}'], prev, 'trans'),
            valu(f'v_cmp_nge_f32 vcc, s{sThr}, v{l}', ['vcc'], [f'v{l}'], prev),
            I(f's_cmp_lg_u64 vcc, 0', 'salu', [], ['vcc'], prev=prev), salu(f's_cselect_b32 s{sT2}, s{bit}, 0', prev),
            salu(f's_or_b32 s{sBad}, s{sBad}, s{sT2}', prev)]
def oepi(q, db, tb0, prev):
    o = O[q] + 16 * db; inv = INV[q]; r = []
    for hf in range(2):
        tb = tb0 + 8 * hf
        if CFG['pkm']:
            ip = inv & ~1; sel = 'op_sel_hi:[1,0]' if inv % 2 == 0 else 'op_sel:[0,1] op_sel_hi:[1,1]'
            for i in range(0, 8, 2):
                r.append(valu(f'v_pk_mul_f32 v[{tb+i}:{tb+i+1}], v[{o+8*hf+i}:{o+8*hf+i+1}], v[{ip}:{ip+1}] {sel}', [f'v{tb+i}', f'v{tb+i+1}'], [f'v{o+8*hf+i}', f'v{o+8*hf+i+1}', f'v{inv}'], prev))
            continue
        for i in range(8):
            r.append(valu(f'v_mul_f32 v{tb+i}, v{o+8*hf+i}, v{inv}', [f'v{tb+i}'], [f'v{o+8*hf+i}', f'v{inv}'], prev))
    for hf in range(2):
        tb = tb0 + 8 * hf
        for i in range(4):
            r.append(valu(f'v_cvt_pk_bf16_f32 v{tb+i}, v{tb+2*i}, v{tb+2*i+1}', [f'v{tb+i}'], [f'v{tb+2*i}', f'v{tb+2*i+1}'], prev))
    for hf in range(2):
        tb = tb0 + 8 * hf
        for e_ in range(2):
            c = 4 * db + 2 * hf + e_
            r.append(I(f'ds_write_b64 v{WA[c]}, {rr("v",tb+2*e_,2)}', 'dsw', [], R('v', tb + 2 * e_, 2) + [f'v{WA[c]}'], prev=prev))
    return r
def oepi_all(q, tb0, prev):
    seq = []; pend = []
    for db in range(4):
        ins = oepi(q, db, tb0, prev)
        nm = 4 if CFG['pkm'] else 8
        mul, cvt, wr = ins[:2*nm], ins[2*nm:2*nm+8], ins[2*nm+8:]
        for hf in range(2):
            work = mul[nm*hf:nm*hf+nm] + cvt[4*hf:4*hf+4]
            seq += work[:2] + pend[:1] + work[2:nm] + pend[1:] + work[nm:]
            pend = wr[2*hf:2*hf+2]
    return seq + pend
def oflush(soff, soff4, prev, ab):
    rd = []; st = []
    for p in range(8):
        tb = ab + 4 * p
        if CFG['hsw'] and (p & 2):
            rd.append([I(f'ds_read_b64 {rr("a",tb,2)}, v{XR+(p&3)} offset:{p*1024+8}', 'ds', R('a', tb, 2), [f'v{XR+(p&3)}'], prev=prev),
                       I(f'ds_read_b64 {rr("a",tb+2,2)}, v{XR+(p&3)} offset:{p*1024}', 'ds', R('a', tb + 2, 2), [f'v{XR+(p&3)}'], prev=prev)])
        else:
            rd.append([I(f'ds_read_b128 {rr("a",tb,4)}, v{XR+(p&3)} offset:{p*1024}', 'ds', R('a', tb, 4), [f'v{XR+(p&3)}'], prev=prev)])
        if CFG['stv'] == 1:
            st.append(I(f'buffer_store_dwordx4 {rr("v",T1,4)}, v{VST}, s[{sO}:{sO+3}], s{soff4 if p >= 4 else soff} offen offset:{(p&3)*1024}{LDF[CFG["stf"]]}', 'st', [], R('a', tb, 4) + [f'v{VST}'], prev=prev, tag=('st',)))
        elif CFG['stv'] == 2:
            st.append(I(f'buffer_store_dword v{T1}, v{VST}, s[{sO}:{sO+3}], s{soff4 if p >= 4 else soff} offen offset:{(p&3)*1024}{LDF[CFG["stf"]]}', 'st', [], R('a', tb, 4) + [f'v{VST}'], prev=prev, tag=('st',)))
        elif CFG['stv'] == 3:
            st.append(I(f'buffer_store_dwordx2 {rr("a",tb,2)}, v{VST}, s[{sO}:{sO+3}], s{soff4 if p >= 4 else soff} offen offset:{(p&3)*1024}{LDF[CFG["stf"]]}', 'st', [], R('a', tb, 4) + [f'v{VST}'], prev=prev, tag=('st',)))
        else:
            st.append(I(f'buffer_store_dwordx4 {rr("a",tb,4)}, v{VST}, s[{sO}:{sO+3}], s{soff4 if p >= 4 else soff} offen offset:{(p&3)*1024}{LDF[CFG["stf"]]}', 'st', [], R('a', tb, 4) + [f'v{VST}'], prev=prev, tag=('st',)))
    return rd, st
def maxpro(q):
    s = S[q]; a, b = MT[q], NMC[q]
    m3 = lambda d, x, y, z: valu(f'v_max3_f32 v{d}, v{x}, v{y}, v{z}', [f'v{d}'], [f'v{x}', f'v{y}', f'v{z}'])
    r = [m3(a, s, s+1, s+2), m3(b, s+3, s+4, s+5), m3(a, a, s+6, s+7), m3(b, b, s+8, s+9), m3(a, a, s+10, s+11), m3(b, b, s+12, s+13),
         m3(a, a, s+14, s+15), valu(f'v_max_f32 v{a}, v{a}, v{b}', [f'v{a}'], [f'v{a}', f'v{b}']),
         valu(f'v_mov_b32 v{b}, v{a}', [f'v{b}'], [f'v{a}']),
         valu(f'v_permlane32_swap_b32 v{a}, v{b}', [f'v{a}', f'v{b}'], [f'v{a}', f'v{b}'], k='perm'),
         valu(f'v_max_f32 v{a}, v{a}, v{b}', [f'v{a}'], [f'v{a}', f'v{b}']),
         valu(f'v_mul_f32 v{b}, s{sNegC}, v{a}', [f'v{b}'], [f'v{a}'])]
    return r

def build_block():
    NG = 512
    gaps = [[] for _ in range(NG)]
    slots = [None] * NG
    def put(g, ins, prio):
        prev = g >= NG
        if prev:
            ins.prev = True; g -= NG
        gaps[g].append((prio, len(gaps[g]), ins))
    for j in range(16):
        b = 32 * j
        for t in range(8):
            slots[b + t] = mfma(S[0], ('a', AK + 4 * t), ('a', AQ[0] + 4 * t), c0=(t == 0))
            slots[b + 16 + t] = mfma(S[1], ('a', AK + 4 * t), ('a', (AN if (CFG['anq'] and j <= 7) else AQ[1]) + 4 * t), c0=(t == 0))
        for f in range(8):
            u, db = f >> 2, f & 3
            slots[b + 24 + f] = mfma(O[0] + 16 * db, ('a', AV + 4 * f), ('v', P[0] + 4 * u), c0=(j == 0 and u == 0))
            g = b + 40 + f
            m = mfma(O[1] + 16 * db, ('a', AV + 4 * f), ('v', P[1] + 4 * u), c0=(j == 0 and u == 0), prev=(g >= NG))
            slots[g % NG] = m
        for q in range(2):
            g0 = b + 9 + 16 * q; s = S[q]
            if j == 0:
                for x in maxpro(q): put(g0, x, 1)
            for r in range(16):
                put(g0 + r, valu(f'v_fma_f32 v{s+r}, v{s+r}, s{sC}, v{NMC[q]}', [f'v{s+r}'], [f'v{s+r}', f'v{NMC[q]}']), 2)
                put(g0 + r + 1, valu(f'v_exp_f32 v{s+r}, v{s+r}', [f'v{s+r}'], [f'v{s+r}'], k='trans'), 3)
                if j == 0 and r == 0:
                    put(g0 + r + 2, valu(f'v_mov_b32 v{L[q]}, v{s}', [f'v{L[q]}'], [f'v{s}']), 4)
                else:
                    put(g0 + r + 2, valu(f'v_add_f32 v{L[q]}, v{L[q]}, v{s+r}', [f'v{L[q]}'], [f'v{L[q]}', f'v{s+r}']), 4)
            for k in range(8):
                put(g0 + 3 + 2 * k, valu(f'v_cvt_pk_bf16_f32 v{P[q]+k}, v{s+2*k}, v{s+2*k+1}', [f'v{P[q]+k}'], [f'v{s+2*k}', f'v{s+2*k+1}']), 5)
        for k in range(16): put(b + 9 + k, vread(k >> 1, k & 1, j % 8), 0)
        for t in range(8): put(b + 24 + t, kread(t, (j + 1) % 8), 0)
        need = ('kv', (j + 1) % 16)
        if CFG['itst'] >= 0:
            put(b, I(f's_cmp_lg_u32 s{sB}, {CFG["itst"]}\ns_cbranch_scc1 L_is{j}\ns_memtime s[{60+2*j}:{61+2*j}]\nL_is{j}:', 'text'), -3)
        if CFG['kl']:
            if j % 2 == 0:
                put(b + CFG['doff'] - 1, I('WAITVM', 'waitvm', tag=('it', (j - 5) % 16)), 100)
                put(b + CFG['doff'] - 1, I('s_barrier', 'bar', [], R('a', AK + 28, 4)), 101)
            d0 = b + CFG['doff']; dsp = CFG['dsp']
            pre, l0, l1 = dma_kv(False, j + 7, ('it', j))
            for x in pre + [l0]: put(d0, x, 0)
            put(d0 + dsp, l1, 0)
            pre, l0, l1 = dma_kv(True, j + 6, ('it', j))
            for x in pre: put(d0 + dsp + 1, x, 0)
            put(d0 + 2 * dsp, l0, 0); put(d0 + 3 * dsp, l1, 0)
            grp = []
        elif CFG['bar2']:
            if j % 2 == 0:
                if CFG['barl']:
                    put(b + CFG['barg'], I('WAITVM', 'waitvm', tag=('kv', (j + 2) % 16)), 100); put(b + CFG['barg'], I('s_barrier', 'bar'), 101)
                else:
                    put(b + CFG['barg'], I('WAITVM', 'waitvm', tag=('kv', (j + 2) % 16)), -2); put(b + CFG['barg'], I('s_barrier', 'bar'), -1)
            grp = dma_tile(j + 6)
        else:
            put(b, I('WAITVM', 'waitvm', tag=need), -2); put(b, I('s_barrier', 'bar'), -1)
            grp = dma_tile(j + 7)
        for i, g in enumerate(grp):
            if CFG['m0e'] and i == 2:
                put(b + 2 + CFG['dsp'], g[0], 0); put(b + 1 + CFG['dsp'] * i, g[2], 0); continue
            for x in g: put(b + 1 + CFG['dsp'] * i, x, 0)
    QI1, QR1, QI0 = CFG['qi1'], CFG['qr1'], CFG['qi0']
    for i, g in enumerate(dma_q2(1, sXW) if CFG['qsp'] else dma_q(1, sXW)):
        for x in g: put(32 * QI1 + 17 + 8 * (i % 2) + 32 * (i // 2) if CFG['qsp'] else 32 * QI1 + 17 + 4 * (i % 4) + 32 * (i // 4), x, 0)
    put(32 * QR1 + 1, I('WAITVM', 'waitvm', tag=('q', 1)), -2)
    for t in range(8):
        put(32 * QR1 - (32 if CFG['anq'] else 8) + t, valu(f'v_add_u32 v{T+t}, s{sXW}, v{KA+t}', [f'v{T+t}'], [f'v{KA+t}']), 6)
        put(32 * QR1 + 1 + t, I(f'ds_read_b128 {rr("a",AN+4*t,4)}, v{T+t}', 'ds', R('a', AN + 4 * t, 4), [f'v{T+t}']), 0)
    put(32 * QI0 + 1, I('s_waitcnt lgkmcnt(0)', 'waitl0'), -2)
    for i, g in enumerate(dma_q2(0, sXW) if CFG['qsp'] else dma_q(0, sXW)):
        for x in g: put(32 * QI0 + 17 + 8 * (i % 2) + 32 * (i // 2) if CFG['qsp'] else 32 * QI0 + 17 + 4 * (i % 4) + 32 * (i // 4), x, 0)
    b = 32 * 15
    put(b + 8, I('WAITVM', 'waitvm', tag=('q', 0)), -2)
    for t in range(8):
        put(b + t, valu(f'v_add_u32 v{T+t}, s{sXW}, v{KA+t}', [f'v{T+t}'], [f'v{KA+t}']), 6)
        put(b + 8 + t, I(f'ds_read_b128 {rr("a",AQ[0]+4*t,4)}, v{T+t}', 'ds', R('a', AQ[0] + 4 * t, 4), [f'v{T+t}']), 0)
    sl = [32 * j + g for j in range(2, 7) for g in (0, 2, 3, 4, 6, 7, 8)]
    for r in range(32):
        put(sl[r] if CFG['anq'] else b + 25 + (r // 4) + (r // 4) // 2, valu(f'v_accvgpr_mov_b32 a{AQ[1]+r}, a{AN+r}', [f'a{AQ[1]+r}'], [f'a{AN+r}']), 6)
    b = 32 * 15
    for i, x in enumerate(lfin(0, sBit0, False)): put(b + 27 + (0, 0, 1, 2, 2, 3, 3, 3)[i], x, 7)
    for i, x in enumerate(lfin(1, sBit1, True)): put(NG + 11 + (0, 0, 1, 2, 2, 3, 3, 3)[i], x, 7)
    if CFG['wsp']:
        ins = oepi_all(0, T, True)
        for i, x in enumerate(ins): put(NG + CFG['e0a'] + i * CFG['e0n'] // len(ins), x, 8)
        ins = oepi_all(1, T1, True)
        for i, x in enumerate(ins): put(NG + CFG['o1s'] + i * CFG['e1n'] // len(ins), x, 8.5)
    for db in range(4 if not CFG['wsp'] else 0):
        ins = oepi(0, db, T, True); g0 = NG + 1 + 6 * db - (1 if db else 0); n = 6 if db else 5
        if db == 3: n = 5
        for i, x in enumerate(ins): put(g0 + i * n // len(ins), x, 8)
        ins = oepi(1, db, T1, True); g0 = NG + CFG['o1s'] + 4 * db
        for i, x in enumerate(ins): put(g0 + i * 4 // len(ins), x, 8.5)
    for q, g0 in ((0, NG + 23), (1, NG + 41)):
        rd, st = oflush(sOprev1 if q else sOprev, sO14 if q else sO4, True, ARB + 32 * q)
        for p in range(8):
            for x in rd[p]: put(g0 + (p // 4 if q == 0 else p // 2), x, 7.5)
        for p in range(8): put(max(NG + CFG['stoff'] + CFG['ssp'] * (8 * q + p), g0 + 4 + p), st[p], {0: 9, 1: -0.5, 2: 99}[CFG['stp']])
    out = []; marks = []
    for g in range(NG):
        if g % 32 == 0: marks.append(len(out))
        out.append(slots[g])
        items = sorted(gaps[g], key=lambda e: (e[0], e[1]))
        head = [x for p, _, x in items if p <= 0]
        streams = {}
        last = [x for p, _, x in items if p >= 99]
        for p, _, x in items:
            if 0 < p < 99:
                key = 'sm' if p <= 5 else p
                streams.setdefault(key, []).append(x)
        out += head
        sl = [streams[k] for k in streams]
        if not CFG['rr']:
            for l_ in sl: out += l_
            out += last
            continue
        while any(sl):
            best = None
            for l_ in sl:
                if not l_: continue
                x = l_[0]; st = 0
                for dist, p in enumerate(reversed(out[-4:])):
                    if p.k in ('valu', 'trans', 'perm') and (p.d & (x.u | x.d if x.k == 'perm' else x.u)):
                        lat = 3 if (x.k == 'perm' or p.k in ('trans', 'perm') or 'vcc' in p.d) else 2
                        st = max(st, lat - dist)
                    if p.k == 'salu' and x.k == 'salu' and p.t.startswith('s_cmp'): pass
                if out[-1].k == 'salu' and out[-1].t.startswith('s_cmp_lg_u64') and x.t.startswith('s_cselect'): st = -100
                key = (st, -len(l_))
                if best is None or key < best[0]: best = (key, l_)
            out.append(best[1].pop(0))
        out += last
    return out, marks

def add_waits(seq, passes):
    out = []; ds = []; vm = []
    for ins in seq:
        if ins.k == 'waitvm':
            n = None
            for i in range(len(vm) - 1, -1, -1):
                if vm[i] is not None and vm[i] == ins.tag:
                    n = len(vm) - 1 - i; break
            if n is None: n = 0
            w = I(f's_waitcnt vmcnt({min(n,63)})', 'wait', tag=('vm', ins, n), prev=ins.prev); out.append(w); continue
        if ins.k == 'waitl0':
            out.append(ins); ds = []; continue
        touched = ins.u | ins.d
        need = None
        for i, (pos, dst) in enumerate(ds):
            if dst & touched: need = i
        if need is not None:
            n = len(ds) - 1 - need
            recent = sum(1 for (pos, dst) in ds if pos > len(out) - CFG['lgk_window'])
            n = min(n, recent, 15)
            out.append(I(f's_waitcnt lgkmcnt({n})', 'wait', tag=('lgkm', ins, n), prev=ins.prev))
            ds = ds[len(ds) - n:] if n else []
        out.append(ins)
        if ins.k in ('ds', 'dsw'): ds.append((len(out), ins.d))
        if ins.k in ('vm', 'st'): vm.append(ins.tag)
        if ins.k == 'bar': pass
    return out

def states(x):
    if x.k == 'nop': return int(x.t.split()[1]) + 1
    return 1
def fix_hazards(seq, name):
    out = []; added = 0
    for ins in seq:
        if ins.k in ('label',): out.append(ins); continue
        req = 0; dist = 0
        for p in reversed(out):
            if dist >= 13: break
            if p.k == 'label': continue
            need = 0
            if p.k == 'mfma':
                if ins.k == 'mfma':
                    ab = ins.u
                    if p.d & ab: need = 12
                    elif (p.d & ins.c) and p.d != ins.c: need = 10
                    elif (p.d & ins.d) and not (p.d == ins.d and ins.c): need = 12
                elif ins.k in ('valu', 'trans', 'perm', 'st', 'ds', 'dsw', 'vm'):
                    if p.d & (ins.u | ins.d): need = 12
                    elif ins.k in ('valu', 'trans', 'perm') and (p.c & ins.d): need = 7
            elif p.k in ('valu', 'trans', 'perm'):
                if ins.k == 'mfma' and (p.d & (ins.u | ins.c)): need = 2
                if ins.k == 'perm' and (p.d & ins.u): need = max(need, 2)
                if p.k == 'trans' and ins.k in ('valu', 'perm', 'mfma', 'st', 'dsw') and (p.d & ins.u): need = max(need, 1)
                if p.k == 'perm' and (p.d & ins.u): need = max(need, 1)
                if ins.k == 'salu' and 'vcc' in p.d and 'vcc' in ins.u: need = max(need, 4)
            elif p.k in ('st', 'dsw'):
                if ins.k in ('valu', 'trans', 'perm') and (p.u & ins.d): need = 2
            elif p.k == 'salu' and 'm0' in p.t.split(',')[0] and ins.k == 'vm': need = 1
            req = max(req, need - dist)
            dist += states(p)
        if req > 0:
            out.append(I(f's_nop {req-1}', 'nop', prev=ins.prev)); added += 1
        out.append(ins)
    if added: print(f'; hazard nops added in {name}: {added}', file=sys.stderr)
    return out

def prologue_text(part=None):
    A = []; B = []; e = A.append
    e('s_cmp_ge_u32 s2, 256'); e('s_cbranch_scc1 L_end')
    e('s_load_dwordx4 s[4:7], s[0:1], 0'); e('s_load_dwordx4 s[48:51], s[0:1], 16')
    e('v_lshrrev_b32 v1, 6, v0'); e('v_and_b32 v0, 63, v0'); e('s_nop 0'); e(f'v_readfirstlane_b32 s{sWv}, v1')
    e('v_lshrrev_b32 v4, 4, v0'); e('v_and_b32 v6, 15, v0')
    for pp in range(4):
        e(f'v_add_u32 v7, {4*pp}, v4'); e('v_xor_b32 v7, v7, v6'); e('v_lshlrev_b32 v7, 4, v7')
        e(f'v_lshl_add_u32 v{QD+pp}, v4, 8, v7')
    e(f's_lshl_b32 s{sW2048}, s{sWv}, 11'); e(f's_lshl_b32 s{sW8192}, s{sWv}, 13'); e(f's_add_u32 s{sXW}, s{sW8192}, 131072')
    e(f's_and_b32 s{sX2}, s{sWv}, 1'); e(f's_add_u32 s{sX2}, s{sX2}, 6'); e(f's_lshl_b32 s{sX2}, s{sX2}, 13')
    e(f's_lshr_b32 s{sT}, s{sWv}, 1'); e(f's_lshl_b32 s{sT}, s{sT}, 16'); e(f's_add_u32 s{sX2}, s{sX2}, s{sT}')
    e(f's_lshl_b32 s{sT}, s{sWv}, 3'); e(f's_lshl_b32 s{sT3}, s{sWv}, 14')
    e(f'v_add_u32 v5, s{sT}, v4')
    e('v_and_b32 v7, 15, v5'); e('v_xor_b32 v7, v7, v6'); e('v_lshlrev_b32 v7, 4, v7'); e(f'v_lshl_add_u32 v{DK0}, v5, 8, v7')
    e('v_add_u32 v7, 4, v5'); e('v_and_b32 v7, 15, v7'); e('v_xor_b32 v7, v7, v6'); e('v_lshlrev_b32 v7, 4, v7'); e(f'v_lshl_add_u32 v{DK1}, v5, 8, v7')
    e('v_lshlrev_b32 v7, 2, v4'); e('v_xor_b32 v7, v7, v6'); e('v_lshlrev_b32 v7, 4, v7'); e(f'v_lshl_add_u32 v{DV}, v5, 8, v7')
    if CFG['pairmode'] == 1:
        e('s_lshr_b32 s3, s2, 4'); e('s_lshl_b32 s3, s3, 3'); e(f's_and_b32 s{sT}, s2, 7'); e(f's_add_u32 s3, s3, s{sT}')
        e(f's_lshr_b32 s{sHalf}, s2, 3'); e(f's_and_b32 s{sHalf}, s{sHalf}, 1')
    else:
        e('s_lshr_b32 s3, s2, 1'); e(f's_and_b32 s{sHalf}, s2, 1')
    if CFG['xor']: e(f's_mul_i32 s{sRot}, s{sHalf}, {CFG["xor"]*8192}')
    e(f's_lshl_b32 s{sHalf}, s{sHalf}, 16')
    e(f's_lshl_b32 s{sHead0}, s3, 17')
    if CFG['rot']:
        e(f's_lshr_b32 s{sRot}, s3, {CFG["rot"]-1}'); e(f's_and_b32 s{sRot}, s{sRot}, 15'); e(f's_lshl_b32 s{sRot}, s{sRot}, 13')
    e(f's_mov_b32 s{sHead}, s{sHead0}'); e(f's_add_u32 s{sHeadN}, s{sHead0}, 0x1000000')
    e(f's_add_u32 s{sQW}, s{sHead0}, s{sHalf}'); e(f's_add_u32 s{sQW}, s{sQW}, s{sT3}')
    srd = lambda srd, lo: [f's_mov_b32 s{srd}, s{lo}', f's_and_b32 s{srd+1}, s{lo+1}, 0xffff', f's_mov_b32 s{srd+2}, 0x4000000', f's_mov_b32 s{srd+3}, 0x20000']
    for r_, lo in ((sQ, 4), (sK, 6), (sV, 48), (sO, 50)):
        e(f's_mov_b32 s{r_+2}, 0x4000000'); e(f's_mov_b32 s{r_+3}, 0x20000')
    e('s_waitcnt lgkmcnt(0)')
    for r_, lo in ((sQ, 4), (sK, 6), (sV, 48), (sO, 50)):
        e(f's_mov_b32 s{r_}, s{lo}'); e(f's_and_b32 s{r_+1}, s{lo+1}, 0xffff')
    e = B.append if CFG['early'] else A.append
    e('v_and_b32 v2, 31, v0'); e('v_lshrrev_b32 v3, 5, v0')
    e('v_and_b32 v4, 15, v2')
    for t in range(8):
        e(f'v_add_u32 v5, {2*t}, v3'); e('v_xor_b32 v5, v5, v4'); e('v_lshlrev_b32 v5, 4, v5')
        e(f'v_lshl_add_u32 v{KA+t}, v2, 8, v5')
    if CFG['hsw']:
        e('v_bfe_u32 v6, v2, 3, 1'); e('v_xor_b32 v5, v6, v3'); e('v_lshlrev_b32 v6, 8, v2'); e('v_lshl_add_u32 v6, v5, 3, v6'); e(f'v_add_u32 v6, s{sXW}, v6')
    else:
        e('v_lshlrev_b32 v6, 8, v2'); e('v_lshl_add_u32 v6, v3, 3, v6'); e(f'v_add_u32 v6, s{sXW}, v6')
    for c in range(16):
        e(f'v_xor_b32 v5, {c}, v4'); e(f'v_lshl_add_u32 v{WA[c]}, v5, 4, v6')
    e('v_bfe_u32 v4, v0, 2, 2')
    e('v_lshl_add_u32 v5, v3, 2, v4')
    e('v_lshlrev_b32 v5, 8, v5')
    e('v_bfe_u32 v6, v0, 4, 1'); e('v_lshl_add_u32 v5, v6, 5, v5')
    e('v_and_b32 v6, 3, v0'); e('v_lshl_add_u32 v5, v6, 3, v5')
    for db in range(4):
        e(f'v_xor_b32 v6, {db}, v4'); e('v_lshl_add_u32 v6, v6, 6, v5')
        e(f'v_add_u32 v{VB+db}, 0x10000, v6')
    e('v_lshlrev_b32 v7, 4, v0'); e(f'v_add_u32 v{VST}, s{sT3}, v7')
    for pp in range(4): e(f'v_add_u32 v{XR+pp}, s{sXW}, v{QD+pp}')
    e(f's_mov_b32 s{sO4}, {OOB:#x}'); e(f's_mov_b32 s{sO14}, {OOB:#x}')
    e(f's_mov_b32 s{sOprev}, {OOB:#x}'); e(f's_mov_b32 s{sOprev1}, {OOB:#x}')
    e(f's_mov_b32 s{sB}, 0'); e(f's_mov_b32 s{sBad}, 0'); e(f's_mov_b32 s{sBit0}, 1'); e(f's_mov_b32 s{sBit1}, 0')
    e(f's_mov_b32 s{sC}, {fbits(cval):#x}'); e(f's_mov_b32 s{sNegC}, {fbits(-cval):#x}')
    thr = -1.0 if CFG['force_slow'] else 2.0 ** CFG['thr_log2']
    e(f's_mov_b32 s{sThr}, {fbits(thr):#x}')
    return [I(t, 'text') for t in (B if part == 'B' else A)]

def prologue_seq(blk0):
    seq = []
    def half(isv, t, tag):
        pre, l0, l1 = dma_kv(isv, t, tag); return pre + [l0, l1]
    ktag = lambda t: ('it', (t - 7) % 16)
    if CFG['kl']:
        seq += [y for g in dma_q(0, sXW) for y in g] + half(False, 0, ('k0',))
        for g in dma_q(1, sX2): seq += g
        seq += half(True, 0, ('kv', 0))
        for tl in range(1, 6): seq += half(False, tl, ktag(tl)) + half(True, tl, ('pv', tl))
    if not CFG['kl']:
        t0 = dma_tile(0)
        for x in [y for g in dma_q(0, sXW) for y in g] + t0[0] + t0[1]: seq.append(x)
        t0[1][-1].tag = ('k0',)
        for g in dma_q(1, sX2): seq += g
        seq += [salu(f's_add_u32 s{sT}, s{sHead}, 0')] if not CFG['xor'] else [salu(f's_add_u32 s{sT}, s{sHead}, s{sRot}')]
        seq += t0[2] + t0[3]
        for tl in range(1, CFG['pdl']):
            gs = dma_tile(tl)
            if tl == 1: gs[1][-1].tag = ('k1',)
            for g in gs: seq += g
    seq.append(salu(f's_add_u32 s{sQW}, s{sHeadN}, s{sHalf}')); seq.append(salu(f's_add_u32 s{sQW}, s{sQW}, s{sT3}'))
    seq += prologue_text('B')
    for t in range(8):
        seq.append(valu(f'v_add_u32 v{T+t}, s{sXW}, v{KA+t}', [f'v{T+t}'], [f'v{KA+t}']))
        seq.append(valu(f'v_add_u32 v{T+8+t}, s{sX2}, v{KA+t}', [f'v{T+8+t}'], [f'v{KA+t}']))
    seq.append(I('WAITVM', 'waitvm', tag=('k0',))); seq.append(I('s_barrier', 'bar'))
    for t in range(8):
        seq.append(I(f'ds_read_b128 {rr("a",AQ[0]+4*t,4)}, v{T+t}', 'ds', R('a', AQ[0] + 4 * t, 4), [f'v{T+t}']))
        seq.append(kread(t, 0))
    late = [x for tl in range(CFG['pdl'], 6) for g in dma_tile(tl) for x in g]
    if CFG['pdw'] == 0: seq += late
    g = -1
    for x in blk0:
        if x.k == 'mfma':
            g += 1
            if g == 24:
                seq.append(I('WAITVM', 'waitvm', tag=(ktag(2) if CFG['kl'] else ('k1',) if CFG['k1s'] else ('kv', 2 if CFG['bar2'] else 1)))); seq.append(I('s_waitcnt lgkmcnt(0)', 'waitl0')); seq.append(I('s_barrier', 'bar'))
                if CFG['kl']: seq += half(False, 6, ktag(6)) + half(True, 6, ('pv', 6)) + half(False, 7, ktag(7))
                for gg in ([] if CFG['kl'] else dma_tile(6) + ([] if CFG['bar2'] else dma_tile(7))): seq += gg
        if x.prev or x.k in ('waitvm', 'bar', 'vm', 'text') or (x.k in ('salu', 'nop') and not x.prev): continue
        seq.append(x)
        if x.k == 'mfma' and g == 7:
            seq.append(I('WAITVM', 'waitvm', tag=('kv', 0))); seq.append(I('s_barrier', 'bar'))
            for t in range(8):
                a1 = AN if CFG['anq'] else AQ[1]
                seq.append(I(f'ds_read_b128 {rr("a",a1+4*t,4)}, v{T+8+t}', 'ds', R('a', a1 + 4 * t, 4), [f'v{T+8+t}']))
            if CFG['pdw'] == 1: seq += late
    if CFG['k1s']:
        seq.append(I('WAITVM', 'waitvm', tag=('kv', 2 if CFG['bar2'] else 1))); seq.append(I('s_barrier', 'bar'))
    return seq

def stamp(i):
    return [f's_memtime s[{60+2*i}:{61+2*i}]', 's_waitcnt lgkmcnt(0)'] if CFG['stamps'] else []
def blockend():
    return [salu(f's_add_u32 s{sOprev}, s{sHead}, s{sHalf}'), salu(f's_add_u32 s{sOprev1}, s{sOprev}, 8192'),
            salu(f's_mov_b32 s{sHead}, s{sHeadN}'),
            salu(f's_add_u32 s{sB}, s{sB}, 1'),
            salu(f's_add_u32 s{sHeadN}, s{sHeadN}, 0x1000000'),
            salu(f's_cmp_ge_u32 s{sB}, 3'), salu(f's_cselect_b32 s{sHeadN}, {OOB:#x}, s{sHeadN}'),
            salu(f's_add_u32 s{sQW}, s{sHeadN}, s{sHalf}'), salu(f's_add_u32 s{sQW}, s{sQW}, s{sT3}'),
            salu(f's_add_u32 s{sO4}, s{sOprev}, 4096'), salu(f's_add_u32 s{sO14}, s{sOprev1}, 4096'),
            salu(f's_lshl_b32 s{sT2}, s{sB}, 1'),
            salu(f's_lshl_b32 s{sBit0}, 1, s{sT2}'), salu(f's_lshr_b32 s{sBit1}, s{sBit0}, 1'),
            salu(f's_cmp_lt_u32 s{sB}, 4')]

def slow_text():
    A = []; e = A.append
    if CFG['fx']:
        e(f's_cmp_eq_u32 s{sBad}, 0'); e('s_cbranch_scc1 L_end'); e('s_waitcnt vmcnt(0) lgkmcnt(0)'); e('s_barrier')
    else:
        e('s_waitcnt vmcnt(0) lgkmcnt(0)'); e('s_barrier')
        e(f's_cmp_eq_u32 s{sBad}, 0'); e('s_cbranch_scc1 L_end')
    G = T; M = MT[0]; N = NMC[0]; Ls = L[0]; s = S[0]; VT = T + 4
    e(f'v_subrev_u32 v{T+8}, s{sW2048}, v{DV}')
    for db in range(4): e(f'v_add_u32 v{VT+db}, s{sW8192}, v{VB+db}')
    e(f'v_mbcnt_lo_u32_b32 v{G}, -1, 0'); e(f'v_mbcnt_hi_u32_b32 v{G}, -1, v{G}')
    e(f'v_lshrrev_b32 v{G+1}, 5, v{G}'); e(f'v_and_b32 v{G}, 31, v{G}'); e(f'v_lshlrev_b32 v{G}, 8, v{G}'); e(f'v_lshl_add_u32 v{G}, v{G+1}, 4, v{G}')
    e(f's_mov_b32 s{sIdx}, 0')
    e('L_slow_loop:')
    e(f's_lshr_b32 s{sT}, s{sBad}, s{sIdx}'); e(f's_and_b32 s{sT}, s{sT}, 1'); e(f's_cmp_eq_u32 s{sT}, 0'); e('s_cbranch_scc1 L_slow_next')
    e(f's_lshr_b32 s{sT}, s{sIdx}, 1'); e(f's_lshl_b32 s{sT}, s{sT}, 24'); e(f's_add_u32 s{sHead}, s{sHead0}, s{sT}')
    e(f's_and_b32 s{sT}, s{sIdx}, 1'); e(f's_lshl_b32 s{sT}, s{sT}, 13'); e(f's_add_u32 s{sOcur}, s{sHead}, s{sHalf}'); e(f's_add_u32 s{sOcur}, s{sOcur}, s{sT}')
    e(f's_lshl_b32 s{sT}, s{sWv}, 14'); e(f's_add_u32 s{sT}, s{sT}, s{sOcur}')
    for t in range(8): e(f'buffer_load_dwordx4 {rr("a",AQ[0]+4*t,4)}, v{G}, s[{sQ}:{sQ+3}], s{sT} offen offset:{32*t}')
    e(f'v_mov_b32 v{M}, 0xff800000')
    def ktile():
        e(f's_lshl_b32 s{sT}, s{sTile}, 13'); e(f's_add_u32 s{sT}, s{sT}, s{sHead}')
        for t in range(8): e(f'buffer_load_dwordx4 {rr("a",AK+4*t,4)}, v{G}, s[{sK}:{sK+3}], s{sT} offen offset:{32*t}')
    def qk():
        e('s_waitcnt vmcnt(0)')
        for t in range(8): e(mfma(s, ('a', AK + 4 * t), ('a', AQ[0] + 4 * t), c0=(t == 0)).t)
        e('s_nop 15')
    e(f's_mov_b32 s{sTile}, 0'); e('L_slow_p1:')
    ktile(); qk()
    for r in range(0, 16, 2): e(f'v_max3_f32 v{M}, v{M}, v{s+r}, v{s+r+1}')
    e(f's_add_u32 s{sTile}, s{sTile}, 1'); e(f's_cmp_lt_u32 s{sTile}, 16'); e('s_cbranch_scc1 L_slow_p1')
    e(f'v_mov_b32 v{N}, v{M}'); e('s_nop 1'); e(f'v_permlane32_swap_b32 v{M}, v{N}'); e('s_nop 1'); e(f'v_max_f32 v{M}, v{M}, v{N}')
    e(f'v_mul_f32 v{N}, s{sNegC}, v{M}'); e(f'v_mov_b32 v{Ls}, 0')
    for r in range(64): e(f'v_mov_b32 v{O[0]+r}, 0')
    e(f's_mov_b32 s{sTile}, 0'); e('L_slow_p2:')
    ktile()
    e(f's_add_u32 m0, s{sW8192}, 65536'); e('s_nop 0')
    for p in range(4): e(f'buffer_load_dwordx4 v{T+8}, s[{sV}:{sV+3}], s{sT} offen offset:{1024*p} lds')
    e(f's_add_u32 m0, s{sW8192}, {65536+4096}'); e(f's_add_u32 s{sT}, s{sT}, 4096')
    for p in range(4): e(f'buffer_load_dwordx4 v{T+8}, s[{sV}:{sV+3}], s{sT} offen offset:{1024*p} lds')
    qk()
    for r in range(16): e(f'v_fma_f32 v{s+r}, v{s+r}, s{sC}, v{N}')
    for r in range(16): e(f'v_exp_f32 v{s+r}, v{s+r}')
    e('s_nop 0')
    for r in range(16): e(f'v_add_f32 v{Ls}, v{Ls}, v{s+r}')
    for k in range(8): e(f'v_cvt_pk_bf16_f32 v{P[0]+k}, v{s+2*k}, v{s+2*k+1}')
    for f in range(8):
        for sec in range(2):
            e(f'ds_read_b64_tr_b16 {rr("a",AV+4*f+2*sec,2)}, v{VT+(f&3)} offset:{(f>>2)*4096+sec*2048}')
    e('s_waitcnt lgkmcnt(0)')
    for f in range(8): e(mfma(O[0] + 16 * (f & 3), ('a', AV + 4 * f), ('v', P[0] + 4 * (f >> 2))).t)
    e(f's_add_u32 s{sTile}, s{sTile}, 1'); e(f's_cmp_lt_u32 s{sTile}, 16'); e('s_cbranch_scc1 L_slow_p2')
    e('s_nop 15')
    e(f'v_mov_b32 v{M}, v{Ls}'); e('s_nop 1'); e(f'v_permlane32_swap_b32 v{Ls}, v{M}'); e('s_nop 1'); e(f'v_add_f32 v{Ls}, v{Ls}, v{M}')
    e(f'v_rcp_f32 v{INV[0]}, v{Ls}'); e('s_nop 1')
    sv = CFG.get('_x')
    seq = []
    global T_save
    for db in range(4): seq += oepi_slow(db)
    e(f's_add_u32 s{sO4}, s{sOcur}, 4096')
    rd, st = oflush(sOcur, sO4, False, ARB)
    seq += [x for g in rd for x in g] + [I('s_waitcnt lgkmcnt(0)', 'wait')] + st
    for x in fix_hazards(seq, 'slow-epi'): e(x.t)
    e('s_waitcnt vmcnt(0)')
    e('L_slow_next:')
    e(f's_add_u32 s{sIdx}, s{sIdx}, 1'); e(f's_cmp_lt_u32 s{sIdx}, 8'); e('s_cbranch_scc1 L_slow_loop')
    return [I(t, 'text') for t in A]
def oepi_slow(db): return oepi(0, db, S[1], False)

def main():
    blk, marks = build_block()
    def filt(l):
        if CFG['nodma']: l = [x for x in l if x.k not in ('vm', 'st')]
        if CFG['novalu'] == 1: l = [x for x in l if x.k not in ('valu', 'trans', 'perm')]
        if CFG['nomfma']: l = [x for x in l if x.k != 'mfma']
        if CFG['nost']: l = [x for x in l if x.k != 'st']
        if CFG['nolds']: l = [x for x in l if x.k not in ('ds', 'dsw')]
        return l
    it0 = blk[:marks[1]]; rest = filt(blk[marks[1]:]);
    blk2, _ = build_block()
    pro = prologue_seq(blk2[:marks[1]])
    it0 = filt(it0)
    blk = it0 + rest
    be = blockend()
    entry = I('L_it1:', 'label')
    full = add_waits(pro + rest + be + it0 + rest + be + it0 + rest + be, 1)
    wm = {}
    for x in full:
        if x.k == 'wait' and x.tag:
            key = (x.tag[0], id(x.tag[1])); wm[key] = min(wm.get(key, 99), x.tag[2])
    def apply(l):
        o = []
        for x in l:
            if x.k == 'waitvm':
                o.append(I(f's_waitcnt vmcnt({min(wm[("vm", id(x))], 63)})', 'wait', prev=x.prev)); continue
            if ('lgkm', id(x)) in wm: o.append(I(f's_waitcnt lgkmcnt({wm[("lgkm", id(x))]})', 'wait', prev=x.prev))
            o.append(x)
        return o
    pro_w = apply(pro); it0_w = apply(it0); rest_w = apply(rest + be)
    body = it0_w + rest_w
    mk = I('', 'label')
    a1 = fix_hazards(pro_w + [mk] + rest_w[:40], 'pro'); pro_f = a1[:a1.index(mk)]; r_a = a1[a1.index(mk) + 1:]
    mk2 = I('', 'label'); mk3 = I('', 'label')
    a2 = fix_hazards(rest_w[-60:] + [mk2] + it0_w + [mk3] + rest_w, 'steady')
    it0_f = a2[a2.index(mk2) + 1:a2.index(mk3)]; rest_f = a2[a2.index(mk3) + 1:]
    chk = fix_hazards(pro_f[-40:] + rest_f[:60], 'entrycheck'); assert len(chk) == 100, len(chk)
    body_f = it0_f + [entry] + rest_f
    tail = [x for x in blk if x.prev and x.k not in ('waitvm',)]
    if CFG['stt'] >= 0:
        def rs(x):
            t = x.t[:len(x.t) - len(LDF[CFG['stf']])] + LDF[CFG['stt']]
            return I(t, x.k, x.d, x.u, x.tag, x.prev, x.c)
        tail = [rs(x) if x.k == 'st' else x for x in tail]
    if CFG['tord']:
        sts = [x for x in tail if x.k == 'st']; oth = [x for x in tail if x.k != 'st']
        arb0 = set(R('a', ARB, 32))
        last0 = max(i for i, x in enumerate(oth) if x.k == 'ds' and (x.d & arb0))
        k = last0 + 1 + CFG['tord']
        tail = oth[:k] + sts[:8] + oth[k:] + sts[8:]
    tail_w = add_waits(tail, 1)
    mark3 = I('', 'label')
    t2 = fix_hazards(body[-60:] + [mark3] + [I('s_waitcnt lgkmcnt(0)', 'wait')] + tail_w, 'tail')
    tail_f = t2[t2.index(mark3) + 1:]
    out = []
    hdr = open('standalone__gqa_softmax__near_ridge.s.ref').read().split('\n')
    name = 'standalone__gqa_softmax__near_ridge_kernel'
    for ln in hdr:
        if ln.startswith('; @launch'): out.append('; @launch grid=(256,1,1) block=(256,1,1) lds=163840')
        elif ln.startswith(';'): out.append(ln)
        else: break
    out += ['.amdgcn_target "amdgcn-amd-amdhsa--gfx950"', '.text', f'.globl {name}', '.p2align 8', f'.type {name},@function', f'{name}:']
    out += stamp(0) + (['s_memrealtime s[80:81]'] if CFG['stamps'] else [])
    out += [x.t for x in prologue_text()]
    out += [x.t for x in pro_f]
    out.append('s_nop 0' if CFG.get('pad') else '.p2align 3' if False else '')
    out += stamp(1)
    out.append('s_branch L_it1')
    out.append('L_loop:')
    out += [x.t for x in body_f]
    if CFG['stamps']:
        out += ['s_cselect_b32 s3, 1, 0', 's_memtime s[84:85]', 's_waitcnt lgkmcnt(0)']
        for b in range(4): out += [f's_cmp_eq_u32 s{sB}, {b+1}', f's_cselect_b32 s{64+2*b}, s84, s{64+2*b}']
        out += ['s_cmp_eq_u32 s3, 1']
    out.append('s_cbranch_scc1 L_loop')
    out += [x.t for x in tail_f]
    if CFG['stamps']:
        out += ['s_waitcnt vmcnt(0)'] + stamp(6) + ['s_memrealtime s[82:83]', 's_load_dwordx2 s[86:87], s[0:1], 32', 's_waitcnt lgkmcnt(0)',
                f's_cmp_lg_u32 s2, {CFG["stampwg"]}', 's_cbranch_scc1 L_nost', f's_cmp_lg_u32 s{sWv}, 0', 's_cbranch_scc1 L_nost',
                's_mov_b32 s88, s86', 's_and_b32 s89, s87, 0xffff', 's_mov_b32 s90, 256', 's_mov_b32 s91, 0x20000', 'v_mov_b32 v1, 0']
        for i, r in enumerate([62, 64, 66, 68, 70, 72]):
            out += [f's_sub_u32 s3, s{r}, s60', 'v_mov_b32 v2, s3', f'buffer_store_dword v2, v1, s[88:91], 0 offen offset:{4*i}']
        out += ['s_sub_u32 s3, s82, s80', 'v_mov_b32 v2, s3', 'buffer_store_dword v2, v1, s[88:91], 0 offen offset:24', 's_waitcnt vmcnt(0)', 'L_nost:']
    if CFG['itst'] >= 0 and CFG['wgst']:
        out += ['s_waitcnt vmcnt(0) lgkmcnt(0)', 's_memtime s[92:93]', 's_waitcnt lgkmcnt(0)']
    elif CFG['itst'] >= 0:
        out += ['s_waitcnt vmcnt(0) lgkmcnt(0)', 's_memtime s[92:93]', 's_load_dwordx2 s[96:97], s[0:1], 32', 's_waitcnt lgkmcnt(0)',
                f's_cmp_lg_u32 s2, {CFG["stampwg"]}', 's_cbranch_scc1 L_nost', f's_cmp_lg_u32 s{sWv}, 0', 's_cbranch_scc1 L_nost',
                's_and_b32 s97, s97, 0xffff', 's_mov_b32 s98, 256', 's_mov_b32 s99, 0x20000', 'v_mov_b32 v1, 0']
        for i in range(16):
            nxt = 62 + 2 * i
            out += [f's_sub_u32 s3, s{nxt}, s{60+2*i}', 'v_mov_b32 v2, s3', f'buffer_store_dword v2, v1, s[96:99], 0 offen offset:{4*i}']
        out += ['s_waitcnt vmcnt(0)', 'L_nost:']
    if CFG['wgst'] and CFG['itst'] >= 0:
        out += ['s_load_dwordx2 s[96:97], s[0:1], 40', 's_waitcnt lgkmcnt(0)', f's_cmp_lg_u32 s{sWv}, 0', 's_cbranch_scc1 L_nost3',
                's_and_b32 s97, s97, 0xffff', 's_mov_b32 s98, 0x10000', 's_mov_b32 s99, 0x20000', 's_lshl_b32 s3, s2, 6', 's_add_u32 s3, s3, 16384', 'v_mov_b32 v1, s3']
        for i in range(16):
            out += [f's_sub_u32 s3, s{62+2*i}, s{60+2*i}', 'v_mov_b32 v2, s3', f'buffer_store_dword v2, v1, s[96:99], 0 offen offset:{4*i}']
        out += ['s_waitcnt vmcnt(0)', 'L_nost3:']
    elif CFG['wgst']:
        out += ['s_load_dwordx2 s[88:89], s[0:1], 40', 's_waitcnt lgkmcnt(0)', f's_cmp_lg_u32 s{sWv}, 0', 's_cbranch_scc1 L_nost2',
                's_and_b32 s89, s89, 0xffff', 's_mov_b32 s90, 0x10000', 's_mov_b32 s91, 0x20000', 's_lshl_b32 s3, s2, 6', 'v_mov_b32 v1, s3']
        vals = ['s80', 's82', ('s72', 's60'), ('s62', 's60'), ('s64', 's60'), ('s66', 's60'), ('s68', 's60'), ('s70', 's60'), ('s72', 's60')]
        for i, r in enumerate(vals):
            out += ([f's_sub_u32 s3, {r[0]}, {r[1]}', 'v_mov_b32 v2, s3'] if isinstance(r, tuple) else [f'v_mov_b32 v2, {r}']) + [f'buffer_store_dword v2, v1, s[88:91], 0 offen offset:{4*i}']
        out += ['s_waitcnt vmcnt(0)', 'L_nost2:']
    out += [x.t for x in slow_text()]
    out += ['L_end:', 's_endpgm', '.section .rodata,"a"', '.p2align 6', f'.amdhsa_kernel {name}',
            '  .amdhsa_next_free_vgpr 512', '  .amdhsa_next_free_sgpr 102', '  .amdhsa_accum_offset 256',
            '  .amdhsa_group_segment_fixed_size 0', '  .amdhsa_kernarg_size 48', '  .amdhsa_user_sgpr_count 2',
            '  .amdhsa_user_sgpr_kernarg_segment_ptr 1', '  .amdhsa_system_sgpr_workgroup_id_x 1', '.end_amdhsa_kernel']
    open(sys.argv[1], 'w').write('\n'.join(o for o in out if o != '') + '\n')
    n = lambda k: sum(1 for x in body_f if x.k == k)
    print('body instrs', len(body_f), {k: n(k) for k in ('mfma', 'valu', 'trans', 'perm', 'ds', 'vm', 'st', 'salu', 'wait', 'nop', 'bar')}, file=sys.stderr)
main()
```
